```python
import torch

def _softmax(x, axis=-1):
    return torch.softmax(x, dim=axis)
def _gelu(x):
    return torch.nn.functional.gelu(x, approximate="tanh")
def _silu(x):
    return torch.nn.functional.silu(x)
def _sigmoid(x):
    return torch.sigmoid(x)
def _layernorm(x, axis=-1, eps=1e-5):
    m = x.mean(dim=axis, keepdim=True)
    v = x.var(dim=axis, keepdim=True, unbiased=False)
    return (x - m) / torch.sqrt(v + eps)
def _scatter_add(tgt, idx, src, axis=0):
    return tgt.clone().index_add_(axis, idx, src)
def _segment_sum(src, seg, n):
    out = torch.zeros((n,) + src.shape[1:], dtype=src.dtype)
    return out.index_add_(0, seg, src)
def _pad(x, pw):
    flat = tuple(v for pair in reversed(pw) for v in pair)
    return torch.nn.functional.pad(x, flat)

kernel_name = 'recurrent_scan__ssm_conv_s5__mixer_channel_mlp__prompt'

def setup_inputs():

    _w = (lambda a: (lambda t: t.to(torch.bfloat16) if t.is_floating_point() else t)(torch.as_tensor(a)))
    def _A_setup():
        B, S, D = 1, 2048, 448
        P = D
        Lambda_re = -0.5 * (lambda _x: torch.exp(torch.as_tensor(_x)))((lambda *s: torch.randn(*s, dtype=torch.bfloat16) * 0.4)(P))
        Lambda_im = (lambda *s: torch.randn(*s, dtype=torch.bfloat16) * 0.4)(P) * 1.0
        B_re = (lambda *s: torch.randn(*s, dtype=torch.bfloat16) * 0.4)(P, D) * (D ** -0.5)
        B_im = (lambda *s: torch.randn(*s, dtype=torch.bfloat16) * 0.4)(P, D) * (D ** -0.5)
        C_re = (lambda *s: torch.randn(*s, dtype=torch.bfloat16) * 0.4)(D, P) * (P ** -0.5)
        C_im = (lambda *s: torch.randn(*s, dtype=torch.bfloat16) * 0.4)(D, P) * (P ** -0.5)
        log_dt = (lambda *s: torch.randn(*s, dtype=torch.bfloat16) * 0.4)(P) * 0.3 - 2.0
        Dskip = (lambda *s: torch.randn(*s, dtype=torch.bfloat16) * 0.2)(D)
        return {
            "x": _w((lambda *s: torch.randn(*s, dtype=torch.bfloat16) * 0.05)(B, S, D)),
            "Lambda_re": _w(Lambda_re),
            "Lambda_im": _w(Lambda_im),
            "B_re": _w(B_re),
            "B_im": _w(B_im),
            "C_re": _w(C_re),
            "C_im": _w(C_im),
            "log_dt": _w(log_dt),
            "Dskip": _w(Dskip),
        }
    _A_in = _A_setup()

    def _B_setup():
        B, S, D, F = 1, 2048, 448, 1792
        return {
            "x": _w((lambda *s: torch.randn(*s, dtype=torch.bfloat16) * 0.05)(B, S, D)),
            "w1": _w((lambda *s: torch.randn(*s, dtype=torch.bfloat16) * 0.8)(D, F) * (D ** -0.5)),
            "b1": _w((lambda *s: torch.randn(*s, dtype=torch.bfloat16) * 0.4)(F)),
            "w2": _w((lambda *s: torch.randn(*s, dtype=torch.bfloat16) * 0.1)(F, D) * (F ** -0.5)),
            "b2": _w((lambda *s: torch.randn(*s, dtype=torch.bfloat16) * 0.1)(D)),
        }
    _B_in = _B_setup()

    return {
        "A_x": _A_in["x"],
        "A_Lambda_re": _A_in["Lambda_re"],
        "A_Lambda_im": _A_in["Lambda_im"],
        "A_B_re": _A_in["B_re"],
        "A_B_im": _A_in["B_im"],
        "A_C_re": _A_in["C_re"],
        "A_C_im": _A_in["C_im"],
        "A_log_dt": _A_in["log_dt"],
        "A_Dskip": _A_in["Dskip"],
        "B_x": _B_in["x"],
        "B_w1": _B_in["w1"],
        "B_b1": _B_in["b1"],
        "B_w2": _B_in["w2"],
        "B_b2": _B_in["b2"],
    }

def reference(A_x, A_Lambda_re, A_Lambda_im, A_B_re, A_B_im, A_C_re, A_C_im, A_log_dt, A_Dskip, B_x, B_w1, B_b1, B_w2, B_b2):
    def _A_ref(x, Lambda_re, Lambda_im, B_re, B_im, C_re, C_im, log_dt, Dskip):
        Bsz, L, H = x.shape
        Lam = Lambda_re + 1j * Lambda_im
        Bmat = B_re + 1j * B_im
        Cmat = C_re + 1j * C_im
        dt = torch.exp(log_dt)
        Lam_bar = torch.exp(dt * Lam)
        B_bar = ((Lam_bar - 1.0) / Lam)[:, None] * Bmat
        Bu = torch.einsum("bld,pd->blp", x + 0j, B_bar)
        h = torch.zeros_like(Bu[:, 0, :])
        hs = []
        for t in range(L):
            h = Lam_bar[None, :] * h + Bu[:, t, :]
            hs.append(h)
        hseq = torch.stack(hs, 1)
        y = 2.0 * torch.einsum("blp,dp->bld", hseq, Cmat).real + x * Dskip[None, None, :]
        return y

    def _B_ref(x, w1, b1, w2, b2):
        y = _layernorm(x, axis=-1)
        h = _gelu(torch.einsum("bsd,df->bsf", y, w1) + b1)
        return torch.einsum("bsf,fd->bsd", h, w2) + b2

    x = A_x
    xn = _layernorm(x, axis=-1)
    s = _A_ref(xn, A_Lambda_re, A_Lambda_im, A_B_re, A_B_im, A_C_re, A_C_im, A_log_dt, A_Dskip)
    g = _silu(_B_ref(xn, B_w1, B_b1, B_w2, B_b2))
    return x + s * g
```

```python
import re

REG_RE = re.compile(r'(?<![\w.])([vas])(?:\[(\d+):(\d+)\]|(\d+))(?![\w.])')

def regs_of(tok):
    out = set()
    t = tok.strip()
    for m in REG_RE.finditer(t):
        k = m.group(1)
        if m.group(4) is not None:
            out.add((k, int(m.group(4))))
        else:
            for i in range(int(m.group(2)), int(m.group(3)) + 1):
                out.add((k, i))
    if re.search(r'\bvcc(_lo|_hi)?\b', t): out.add(('vcc', 0))
    if re.search(r'\bexec(_lo|_hi)?\b', t): out.add(('exec', 0))
    if re.search(r'\bm0\b', t): out.add(('m0', 0))
    return out

def split_ops(s):
    ops, depth, cur = [], 0, ''
    for ch in s:
        if ch == '[': depth += 1
        if ch == ']': depth -= 1
        if ch == ',' and depth == 0:
            ops.append(cur.strip()); cur = ''
        else:
            cur += ch
    if cur.strip(): ops.append(cur.strip())
    return ops

TRANS = ('v_exp_f32', 'v_log_f32', 'v_rcp_f32', 'v_rsq_f32', 'v_sqrt_f32', 'v_sin_f32', 'v_cos_f32', 'v_rcp_iflag_f32')

class Ins:
    __slots__ = ('text', 'mn', 'ops', 'rd', 'wr', 'kind', 'tag', 'lds_dma', 'passes', 'srcc', 'srcab')
    def __init__(self, text, tag=None):
        self.text = text
        self.tag = tag
        body = text.split(';')[0].strip()
        parts = body.split(None, 1)
        self.mn = parts[0]
        rest = parts[1] if len(parts) > 1 else ''
        self.ops = split_ops(rest)
        self.rd, self.wr = set(), set()
        self.lds_dma = False
        self.passes = 0
        self.srcc = set(); self.srcab = set()
        mn, ops = self.mn, self.ops
        R = regs_of
        first = lambda o: o.split()[0] if o else ''
        if mn.startswith('v_mfma'):
            self.kind = 'mfma'
            self.passes = 8 if '32x32' in mn else 4
            self.wr = R(ops[0]); self.srcab = R(ops[1]) | R(ops[2]); self.srcc = R(first(ops[3]))
            self.rd = self.srcab | self.srcc
        elif mn.startswith('v_'):
            self.kind = 'valu'
            if mn.startswith('v_cmp'):
                self.wr = R(ops[0]); self.rd = set().union(*[R(o) for o in ops[1:]])
                if mn.startswith('v_cmpx'): self.wr |= {('exec', 0)}
            elif mn.startswith('v_permlane') and 'swap' in mn:
                self.wr = R(ops[0]) | R(ops[1]); self.rd = set(self.wr)
            elif mn in ('v_readfirstlane_b32', 'v_readlane_b32'):
                self.wr = R(ops[0]); self.rd = set().union(*[R(o) for o in ops[1:]])
            elif mn in ('v_nop',):
                pass
            else:
                self.wr = R(ops[0])
                srcs = ops[1:]
                if mn.startswith(('v_add_co', 'v_sub_co', 'v_addc_co', 'v_subb_co', 'v_subrev_co', 'v_mad_u64', 'v_div_scale')):
                    self.wr |= R(ops[1]); srcs = ops[2:]
                self.rd = set().union(*[R(o) for o in srcs]) if srcs else set()
                if mn.startswith(('v_fmac', 'v_dot2c', 'v_pk_fmac', 'v_writelane', 'v_mac')): self.rd |= R(ops[0])
                if 'dst_unused:UNUSED_PRESERVE' in text or '_d16' in mn: self.rd |= R(ops[0])
                if mn.startswith('v_cndmask') and len(ops) == 3: self.rd |= {('vcc', 0)}
            self.rd |= {('exec', 0)}
        elif mn.startswith('ds_'):
            self.kind = 'ds'
            if mn.startswith(('ds_read', 'ds_bpermute', 'ds_permute', 'ds_swizzle')) or '_rtn' in mn:
                self.wr = R(first(ops[0])); self.rd = set().union(*[R(first(o)) for o in ops[1:]])
            else:
                self.rd = set().union(*[R(first(o)) for o in ops])
        elif mn.startswith(('buffer_', 'global_')):
            self.kind = 'vmem'
            toks = text.split(';')[0].split()
            self.lds_dma = ('lds' in toks) or ('_lds_' in mn)
            if mn.startswith('buffer_'):
                if mn.startswith(('buffer_wbl2', 'buffer_inv')):
                    pass
                elif self.lds_dma:
                    self.rd = set().union(*[R(first(o)) for o in ops]) | {('m0', 0)}
                elif 'load' in mn:
                    self.wr = R(ops[0]); self.rd = set().union(*[R(first(o)) for o in ops[1:]])
                    if 'd16' in mn: self.rd |= self.wr
                elif 'atomic' in mn:
                    self.rd = set().union(*[R(first(o)) for o in ops])
                    if 'sc0' in toks: self.wr = R(ops[0])
                else:
                    self.rd = set().union(*[R(first(o)) for o in ops])
            else:
                if self.lds_dma:
                    self.rd = set().union(*[R(first(o)) for o in ops]) | {('m0', 0)}
                elif 'load' in mn:
                    self.wr = R(ops[0]); self.rd = set().union(*[R(first(o)) for o in ops[1:]])
                    if 'd16' in mn: self.rd |= self.wr
                else:
                    self.rd = set().union(*[R(first(o)) for o in ops])
        elif mn.startswith('s_'):
            if mn.startswith(('s_load', 's_buffer_load', 's_memtime', 's_memrealtime')):
                self.kind = 'smem'
                self.wr = R(ops[0]); self.rd = set().union(*[R(first(o)) for o in ops[1:]]) if len(ops) > 1 else set()
            elif mn in ('s_waitcnt', 's_nop', 's_barrier', 's_endpgm', 's_sleep', 's_setprio', 's_branch') or mn.startswith('s_cbranch'):
                self.kind = 'ctl'
                if mn == 's_cbranch_vccz' or mn == 's_cbranch_vccnz': self.rd = {('vcc', 0)}
                if mn == 's_cbranch_execz' or mn == 's_cbranch_execnz': self.rd = {('exec', 0)}
            elif mn.startswith(('s_cmp', 's_bitcmp')):
                self.kind = 'salu'; self.rd = set().union(*[R(o) for o in ops])
            else:
                self.kind = 'salu'
                self.wr = R(ops[0]); self.rd = set().union(*[R(o) for o in ops[1:]]) if len(ops) > 1 else set()
                if 'saveexec' in mn: self.wr |= {('exec', 0)}; self.rd |= {('exec', 0)}
                if mn.startswith(('s_addk', 's_mulk', 's_cmov')): self.rd |= R(ops[0])
        else:
            raise ValueError('cannot classify: ' + text)

def is_vec(r): return r[0] in ('v', 'a')

class Gen:
    def __init__(self):
        self.items = []
        self.ntok = 0
    def __call__(self, text, tag=None):
        toks = []
        for line in text.split('\n'):
            line = line.strip()
            if not line: continue
            if line.startswith(';'):
                self.items.append(('raw', '    ' + line)); continue
            ins = Ins(line, tag)
            self.items.append(ins)
            toks.append(ins)
        return toks[-1] if toks else None
    def label(self, name): self.items.append(('label', name))
    def raw(self, text): self.items.append(('raw', text))
    def comment(self, text): self.items.append(('raw', '    ; ' + text))
    def wait_vm(self, ins): self.items.append(('waitvm', ins))
    def wait_ds(self, ins): self.items.append(('waitds', ins))
    def drain(self): self.items.append(('drain',))
    def save(self): self.items.append(('save',))
    def restore(self): self.items.append(('restore',))
    def nop(self, n=1):
        while n > 0:
            k = min(n, 16); self('s_nop %d' % (k - 1)); n -= k

    def finalize(self, verbose=False):
        out = []
        pend_vm, pend_ds = [], []
        smem_pend = []
        hist = []
        stats = {'nops': 0, 'waits': 0}
        saved = []
        def emit_text(t): out.append(t)
        def push_hist(ins):
            hist.append(ins)
            if len(hist) > 40: hist.pop(0)
        def ws_of(ins):
            if ins.mn == 's_nop': return int(ins.ops[0], 0) + 1
            return 1
        def emit_ins(ins):
            emit_text('    ' + ins.text); push_hist(ins)
        def do_wait(vm=None, lg=None):
            parts = []
            if vm is not None: parts.append('vmcnt(%d)' % vm)
            if lg is not None: parts.append('lgkmcnt(%d)' % lg)
            w = Ins('s_waitcnt ' + ' '.join(parts)); apply_wait(w); emit_ins(w); stats['waits'] += 1
        def apply_wait(w):
            t = w.text
            m = re.search(r'vmcnt\((\d+)\)', t)
            if m:
                n = int(m.group(1))
                while len(pend_vm) > n: pend_vm.pop(0)
            m = re.search(r'lgkmcnt\((\d+)\)', t)
            if m:
                n = int(m.group(1))
                if n == 0: smem_pend.clear()
                if not smem_pend or n == 0:
                    while len(pend_ds) > n: pend_ds.pop(0)
        def need_wait_for(lst, idx, maxc):
            return min(len(lst) - 1 - idx, maxc)
        def dist_since(pred):
            d = 0
            for h in reversed(hist):
                if pred(h): return d
                d += ws_of(h)
            return None
        def require(pred, n):
            d = dist_since(pred)
            if d is not None and d < n:
                k = n - d
                stats['nops'] += k
                while k > 0:
                    q = min(k, 16); emit_ins(Ins('s_nop %d' % (q - 1))); k -= q
        for it in self.items:
            if isinstance(it, tuple):
                if it[0] == 'label':
                    emit_text(it[1] + ':')
                elif it[0] == 'raw':
                    emit_text(it[1])
                elif it[0] == 'waitvm':
                    if it[1] in pend_vm:
                        do_wait(vm=need_wait_for(pend_vm, pend_vm.index(it[1]), 63))
                elif it[0] == 'waitds':
                    if it[1] in pend_ds:
                        do_wait(lg=0 if smem_pend else need_wait_for(pend_ds, pend_ds.index(it[1]), 15))
                elif it[0] == 'drain':
                    do_wait(vm=0, lg=0)
                elif it[0] == 'save':
                    saved.append((list(pend_vm), list(pend_ds), list(smem_pend), list(hist)))
                elif it[0] == 'restore':
                    a, b, c_, d = saved.pop()
                    pend_vm[:] = a; pend_ds[:] = b; smem_pend[:] = c_; hist[:] = d
                continue
            ins = it
            touch = ins.rd | ins.wr
            if ins.mn == 's_waitcnt':
                apply_wait(ins); emit_ins(ins); continue
            vm_n = lg_n = None
            for i in range(len(pend_vm) - 1, -1, -1):
                p = pend_vm[i]
                if p.wr & touch:
                    vm_n = need_wait_for(pend_vm, i, 63); break
            for i in range(len(pend_ds) - 1, -1, -1):
                p = pend_ds[i]
                if p.wr & touch:
                    lg_n = need_wait_for(pend_ds, i, 15); break
            if any(p.wr & touch for p in smem_pend): lg_n = 0
            if lg_n is not None and smem_pend: lg_n = 0
            if vm_n is not None or lg_n is not None: do_wait(vm=vm_n, lg=lg_n)
            if ins.kind == 'vmem' and len(pend_vm) >= 63: do_wait(vm=62)
            vrd = {r for r in ins.rd if is_vec(r)}
            vwr = {r for r in ins.wr if is_vec(r)}
            srd = {r for r in ins.rd if r[0] in ('s', 'vcc')}
            if ins.kind == 'mfma':
                require(lambda h: h.kind == 'valu' and (h.wr & vrd), 2)
                require(lambda h: h.kind == 'valu' and ('exec', 0) in h.wr, 4)
                require(lambda h: h.kind == 'mfma' and (h.wr & ins.srcab), 12)
                require(lambda h: h.kind == 'mfma' and (h.wr & ins.srcc) and (h.wr != ins.srcc or h.passes != ins.passes), 10)
                require(lambda h: h.kind == 'mfma' and (h.wr & ins.wr) and not (h.wr == ins.srcc and h.passes == ins.passes), 10)
            if ins.kind in ('valu', 'vmem', 'ds'):
                require(lambda h: h.kind == 'mfma' and h.passes == 8 and (h.wr & (vrd | vwr)), 12)
                require(lambda h: h.kind == 'mfma' and h.passes == 4 and (h.wr & (vrd | vwr)), 8)
            if ins.kind == 'valu' or (ins.kind in ('ds', 'vmem') and vwr):
                require(lambda h: h.kind == 'mfma' and h.passes == 8 and (h.srcc & vwr), 7)
                require(lambda h: h.kind == 'mfma' and h.passes == 4 and (h.srcc & vwr), 3)
            if ins.kind == 'valu':
                if ins.mn not in TRANS:
                    require(lambda h: h.mn in TRANS and (h.wr & vrd), 1)
                else:
                    require(lambda h: h.mn in TRANS and (h.wr & vrd), 1)
                if not ins.mn.startswith('v_dot2'):
                    require(lambda h: h.mn.startswith('v_dot2') and (h.wr & (vrd | vwr)), 3)
                if ins.mn.startswith('v_permlane') or 'dpp' in ins.text or 'row_' in ins.text or 'quad_perm' in ins.text:
                    require(lambda h: h.kind == 'valu' and (h.wr & vrd), 2)
                    require(lambda h: h.kind == 'valu' and ('exec', 0) in h.wr, 5)
                if ins.mn in ('v_readfirstlane_b32', 'v_readlane_b32'):
                    require(lambda h: h.kind == 'valu' and (h.wr & vrd), 1)
                    require(lambda h: h.kind == 'valu' and ('exec', 0) in h.wr, 4)
                if srd:
                    require(lambda h: h.kind == 'valu' and (h.wr & srd), 2)
                if ins.mn in ('v_readlane_b32', 'v_writelane_b32'):
                    require(lambda h: h.kind == 'valu' and (h.wr & srd), 4)
                if 'sdwa' in ins.text or 'op_sel' in ins.text or '_sel:' in ins.text:
                    pass
                require(lambda h: h.kind == 'valu' and ('dst_sel' in h.text) and (h.wr & (vrd | vwr)), 1)
                require(lambda h: h.kind == 'vmem' and 'store' in h.mn and ('x4' in h.mn or 'x3' in h.mn) and (regs_of(h.ops[0] if h.mn.startswith('buffer') else h.ops[1]) & vwr), 2)
            if ins.kind in ('ds', 'vmem') and vwr:
                require(lambda h: h.kind == 'vmem' and 'store' in h.mn and ('x4' in h.mn or 'x3' in h.mn) and (regs_of(h.ops[0] if h.mn.startswith('buffer') else h.ops[1]) & vwr), 1)
            if ins.kind == 'vmem':
                sr = {r for r in ins.rd if r[0] == 's'}
                require(lambda h: h.kind == 'valu' and (h.wr & sr), 5)
                if ins.lds_dma:
                    require(lambda h: h.kind == 'salu' and ('m0', 0) in h.wr, 1)
            if ins.kind == 'salu' or ins.kind == 'smem':
                sr = {r for r in ins.rd if r[0] in ('s', 'vcc')}
                require(lambda h: h.kind == 'valu' and (h.wr & sr), 2)
            if ins.mn in ('s_cbranch_vccz', 's_cbranch_vccnz'):
                require(lambda h: h.kind == 'valu' and ('vcc', 0) in h.wr, 5)
            if ins.mn in ('s_cbranch_execz', 's_cbranch_execnz'):
                require(lambda h: h.kind == 'valu' and ('exec', 0) in h.wr, 5)
            emit_ins(ins)
            if ins.kind == 'vmem': pend_vm.append(ins)
            elif ins.kind == 'ds': pend_ds.append(ins)
            elif ins.kind == 'smem': smem_pend.append(ins)
            if ins.kind == 'ds' and len(pend_ds) > 15 and False:
                pass
        if verbose: print('finalize:', stats, 'lines', len(out))
        return '\n'.join(out) + '\n'

class Regs:
    def __init__(self, kind, lo, hi):
        self.kind, self.lo, self.hi = kind, lo, hi
        self.used = [False] * (hi + 1)
        self.maxused = lo - 1
    def alloc(self, n=1, align=1):
        if n >= 2: align = max(align, 2)
        b = self.lo
        while True:
            b = (b + align - 1) // align * align
            if b + n - 1 > self.hi: raise RuntimeError('out of %s registers (need %d)' % (self.kind, n))
            if not any(self.used[b:b + n]):
                for i in range(b, b + n): self.used[i] = True
                self.maxused = max(self.maxused, b + n - 1)
                return b
            b += 1
    def free(self, b, n=1):
        for i in range(b, b + n):
            assert self.used[i], (self.kind, i)
            self.used[i] = False

def rng(kind, b, n):
    return '%s%d' % (kind, b) if n == 1 else '%s[%d:%d]' % (kind, b, b + n - 1)
def V(b, n=1): return rng('v', b, n)
def A(b, n=1): return rng('a', b, n)
def S(b, n=1): return rng('s', b, n)
```

```python
import struct
def f2u(f): return struct.unpack('<I', struct.pack('<f', f))[0]
def fhex(f): return '0x%08x' % f2u(f)
NAME = 'recurrent_scan__ssm_conv_s5__mixer_channel_mlp__prompt_kernel'
OFF_HM = 0
OFF_HS = OFF_HM + 64 * 112 * 1024
OFF_ST = OFF_HS + 64 * 56 * 1024
OFF_EG = OFF_ST + 2048 * 8
OFF_FM = OFF_EG + 14 * 16 * 512
OFF_FS = OFF_FM + 32 * 128
OFF_X  = OFF_FS + 32 * 128
OFF_DBG = OFF_X + 256
WS_USED = 32 << 20
L_XR = 0
L_BR = 49152
L_WR = 73728
L_SM = 155648
L_CS = 0
L_B1 = L_CS + 768
L_STAT = L_B1 + 512
L_SEG = L_STAT + 1024
LDS_BYTES = 163840
LOG2E = 1.4426950408889634
```

```python
from asmlib import *
from consts import *

def header(launch_lines):
    ref = open('recurrent_scan__ssm_conv_s5__mixer_channel_mlp__prompt.s.ref').read()
    lines = []
    for l in ref.split('\n'):
        if l.startswith('; Override') or l.startswith('; grid=') or '@launch' in l: continue
        if not l.startswith(';'): break
        lines.append(l)
    return '\n'.join(lines) + '\n' + '\n'.join(launch_lines) + '\n'

class Ctx:
    pass

def prologue(g, c, nwg_exit=224):
    s = c.s
    g('s_cmp_ge_u32 s2, %d' % nwg_exit)
    g('s_cbranch_scc1 L_exit')
    g('s_load_dwordx16 s[44:59], s[0:1], 0')
    g('s_load_dwordx16 s[60:75], s[0:1], 64')
    g('s_load_dwordx2 s[76:77], s[0:1], 128')
    v = c.v
    c.lane = v.alloc(); c.li = v.alloc(); c.lh = v.alloc()
    g(f'v_lshrrev_b32 v{c.li}, 6, v0')
    g(f'v_and_b32 v{c.lane}, 63, v0')
    g(f'v_readfirstlane_b32 s3, v{c.li}')
    g(f'v_and_b32 v{c.li}, 31, v{c.lane}')
    g(f'v_lshrrev_b32 v{c.lh}, 5, v{c.lane}')
    g('s_and_b32 s80, s2, 7')
    g('s_lshr_b32 s81, s2, 3')
    g('s_mul_i32 s82, s81, 37')
    g('s_lshr_b32 s82, s82, 8')
    g('s_mul_i32 s83, s82, 7')
    g('s_sub_u32 s83, s81, s83')
    g('s_lshr_b32 s84, s80, 1')
    g('s_lshl_b32 s84, s84, 2')
    g('s_add_u32 s4, s84, s82')
    g('s_and_b32 s84, s80, 1')
    g('s_mul_i32 s84, s84, 7')
    g('s_add_u32 s5, s84, s83')
    g('s_lshl_b32 s84, s80, 2')
    g('s_add_u32 s6, s84, s82')
    g('s_mov_b32 s7, s83')
    g('s_lshl_b32 s84, s82, 1')
    g('s_add_u32 s8, s83, s84')
    g('s_cmp_ge_u32 s8, 7')
    g('s_cselect_b32 s84, 7, 0')
    g('s_sub_u32 s8, s8, s84')
    g('s_cmp_ge_u32 s8, 7')
    g('s_cselect_b32 s84, 7, 0')
    g('s_sub_u32 s8, s8, s84')
    g('s_mov_b32 s9, s82')
    g('s_waitcnt lgkmcnt(0)')
    def srd(dst, ptr, nbytes):
        g(f's_mov_b32 s{dst}, s{ptr}')
        g(f's_and_b32 s{dst+1}, s{ptr+1}, 0xffff')
        g(f's_mov_b32 s{dst+2}, {nbytes}')
        g(f's_mov_b32 s{dst+3}, 0x20000')
    srd(12, 44, 2048 * 896)
    srd(16, 50, 448 * 896)
    srd(20, 52, 448 * 896)
    srd(24, 64, 448 * 3584)
    srd(28, 76, WS_USED)
    srd(36, 68, 1792 * 896)
    srd(40, 72, 2048 * 448 * 4)
    g('s_cmp_ge_u32 s3, 2')
    g('s_cselect_b32 s32, s56, s54')
    g('s_cselect_b32 s33, s57, s55')
    g('s_and_b32 s33, s33, 0xffff')
    g(f's_mov_b32 s34, {448 * 896}')
    g('s_mov_b32 s35, 0x20000')

def pi_of(g, dst, i, t0, t1):
    g(f'v_bfe_u32 v{t0}, v{i}, 2, 1')
    g(f'v_lshlrev_b32 v{t0}, 4, v{t0}')
    g(f'v_lshrrev_b32 v{t1}, 3, v{i}')
    g(f'v_lshl_add_u32 v{t0}, v{t1}, 2, v{t0}')
    g(f'v_and_b32 v{t1}, 3, v{i}')
    g(f'v_add_u32 v{dst}, v{t0}, v{t1}')

def sigma_of(g, dst, i, t0, t1):
    g(f'v_and_b32 v{t0}, 0x13, v{i}')
    g(f'v_bfe_u32 v{t1}, v{i}, 2, 1')
    g(f'v_lshl_add_u32 v{t0}, v{t1}, 3, v{t0}')
    g(f'v_bfe_u32 v{t1}, v{i}, 3, 1')
    g(f'v_lshl_add_u32 v{dst}, v{t1}, 2, v{t0}')

def phase1_setup(g, c):
    v = c.v
    t = [v.alloc() for _ in range(6)]
    L, I, H = c.lane, c.li, c.lh
    c.vox = [v.alloc() for _ in range(4)]
    c.vob = v.alloc()
    c.vow = [v.alloc() for _ in range(4)]
    g(f'v_lshrrev_b32 v{t[0]}, 3, v{L}')
    g(f'v_lshrrev_b32 v{t[1]}, 4, v{L}')
    g(f'v_and_b32 v{t[2]}, 7, v{L}')
    g('s_lshl_b32 s84, s3, 5')
    g('s_mov_b32 s85, 896')
    for m in range(4):
        g(f'v_add_u32 v{t[3]}, {8*m}, v{t[0]}')
        g(f'v_add_u32 v{t[3]}, s84, v{t[3]}')
        g(f'v_mul_lo_u32 v{t[3]}, v{t[3]}, s85')
        g(f'v_add_u32 v{t[4]}, {4*(m&1)}, v{t[1]}')
        g(f'v_xor_b32 v{t[4]}, v{t[2]}, v{t[4]}')
        g(f'v_lshl_add_u32 v{c.vox[m]}, v{t[4]}, 4, v{t[3]}')
    g('s_lshl_b32 s84, s3, 3')
    g(f'v_add_u32 v{t[3]}, s84, v{t[0]}')
    g(f'v_mul_lo_u32 v{t[3]}, v{t[3]}, s85')
    g('s_and_b32 s84, s3, 1')
    g('s_lshl_b32 s84, s84, 2')
    g(f'v_add_u32 v{t[4]}, s84, v{t[1]}')
    g(f'v_xor_b32 v{t[4]}, v{t[2]}, v{t[4]}')
    g(f'v_lshl_add_u32 v{c.vob}, v{t[4]}, 4, v{t[3]}')
    g('s_mov_b32 s85, 3584')
    g(f'v_and_b32 v{t[3]}, 15, v{L}')
    g(f'v_lshlrev_b32 v{t[4]}, 2, v{t[1]}')
    g(f'v_xor_b32 v{t[3]}, v{t[3]}, v{t[4]}')
    g(f'v_lshlrev_b32 v{t[3]}, 4, v{t[3]}')
    for m in range(4):
        g(f'v_add_u32 v{t[4]}, {4*m}, v{t[1]}')
        g(f'v_mul_lo_u32 v{t[4]}, v{t[4]}, s85')
        g(f'v_add_u32 v{c.vow[m]}, v{t[4]}, v{t[3]}')
    g(f's_mul_i32 s86, s4, {128*896}')
    g(f's_mul_i32 s87, s5, {32*896}')
    g(f's_mul_i32 s88, s3, {16*3584}')
    g('s_lshl_b32 s84, s5, 8')
    g('s_add_u32 s88, s88, s84')
    g('s_lshl_b32 s89, s3, 12')
    g('s_lshl_b32 s90, s3, 10')
    g('s_mov_b32 s91, s8')
    for k in t: v.free(k)

def dma_chunk_setup(g):
    g('s_lshl_b32 s84, s91, 7')
    g('s_add_u32 s92, s86, s84')
    g('s_add_u32 s93, s87, s84')
    g(f's_mul_i32 s84, s91, {64*3584}')
    g('s_add_u32 s94, s88, s84')
    g('s_add_u32 s91, s91, 1')
    g('s_cmp_eq_u32 s91, 7')
    g('s_cselect_b32 s91, 0, s91')

def dma_list(c, slot, nt=''):
    out = []
    for m in range(4):
        out.append((f's_add_u32 m0, s89, {L_XR + slot*16384 + m*1024}', f'buffer_load_dwordx4 v{c.vox[m]}, s[12:15], s92 offen lds{nt}'))
    out.append((f's_add_u32 m0, s90, {L_BR + slot*8192}', f'buffer_load_dwordx4 v{c.vob}, s[16:19], s93 offen lds{nt}'))
    out.append((f's_add_u32 m0, s90, {L_BR + slot*8192 + 4096}', f'buffer_load_dwordx4 v{c.vob}, s[20:23], s93 offen lds{nt}'))
    for m in range(4):
        out.append((f's_add_u32 m0, s89, {L_WR + slot*16384 + m*1024}', f'buffer_load_dwordx4 v{c.vow[m]}, s[24:27], s94 offen lds{nt}'))
    return out

def phase1_lds_addrs(g, c):
    v = c.v
    t = [v.alloc() for _ in range(8)]
    L, I, H = c.lane, c.li, c.lh
    c.pi = v.alloc(); c.sg = v.alloc()
    pi_of(g, c.pi, I, t[0], t[1])
    sigma_of(g, c.sg, I, t[0], t[1])
    c.ax = [v.alloc() for _ in range(4)]
    c.ab = [v.alloc() for _ in range(4)]
    c.aw = [[v.alloc() for _ in range(4)] for _ in range(4)]
    g('s_lshl_b32 s84, s3, 5')
    g(f'v_add_u32 v{t[0]}, s84, v{c.pi}')
    g(f'v_lshlrev_b32 v{t[0]}, 7, v{t[0]}')
    g(f'v_bfe_u32 v{t[1]}, v{c.pi}, 1, 3')
    g(f'v_xor_b32 v{t[1]}, v{t[1]}, v{H}')
    g(f'v_lshlrev_b32 v{t[2]}, 7, v{c.sg}')
    g(f'v_bfe_u32 v{t[3]}, v{c.sg}, 1, 3')
    g(f'v_xor_b32 v{t[3]}, v{t[3]}, v{H}')
    g(f'v_bfe_u32 v{t[4]}, v{L}, 2, 2')
    g(f'v_lshlrev_b32 v{t[5]}, 3, v{H}')
    g(f'v_add_u32 v{t[5]}, v{t[5]}, v{t[4]}')
    g(f'v_lshlrev_b32 v{t[5]}, 8, v{t[5]}')
    g(f'v_bfe_u32 v{t[6]}, v{L}, 4, 1')
    g(f'v_lshlrev_b32 v{t[6]}, 1, v{t[6]}')
    g(f'v_and_b32 v{t[7]}, 1, v{L}')
    g(f'v_add_u32 v{t[6]}, v{t[6]}, v{t[7]}')
    g(f'v_lshlrev_b32 v{t[6]}, 4, v{t[6]}')
    g(f'v_add_u32 v{t[5]}, v{t[5]}, v{t[6]}')
    g(f'v_bfe_u32 v{t[7]}, v{L}, 1, 1')
    g(f'v_lshl_add_u32 v{t[5]}, v{t[7]}, 3, v{t[5]}')
    for s in range(4):
        g(f's_add_u32 s84, s3, {s}')
        g('s_and_b32 s84, s84, 3')
        g('s_lshl_b32 s85, s84, 1')
        g(f'v_xor_b32 v{t[6]}, s85, v{t[1]}')
        g(f'v_lshl_add_u32 v{c.ax[s]}, v{t[6]}, 4, v{t[0]}')
        if L_XR: g(f'v_add_u32 v{c.ax[s]}, {L_XR}, v{c.ax[s]}')
        g(f'v_xor_b32 v{t[6]}, s85, v{t[3]}')
        g(f'v_lshl_add_u32 v{t[6]}, v{t[6]}, 4, v{t[2]}')
        g(f'v_add_u32 v{c.ab[s]}, {L_BR}, v{t[6]}')
        g('s_lshl_b32 s85, s84, 12')
        g(f's_add_u32 s85, s85, {L_WR}')
        for f in range(4):
            g(f'v_xor_b32 v{t[6]}, {f}, v{t[4]}')
            g(f'v_lshl_add_u32 v{t[6]}, v{t[6]}, 6, v{t[5]}')
            g(f'v_add_u32 v{c.aw[f][s]}, s85, v{t[6]}')
    for k in t: v.free(k)

def interleave(g, mfmas, fillers, tail=()):
    n = len(mfmas)
    per = [[] for _ in range(n)]
    for k, f in enumerate(fillers):
        per[min(n - 1, k * n // max(1, len(fillers)))].append(f)
    toks = []
    for m, mf in enumerate(mfmas):
        g(mf)
        for f in per[m]:
            if isinstance(f, tuple):
                for x in f: toks.append(g(x))
            elif callable(f):
                f()
            else:
                toks.append(g(f))
    for f in tail: g(f)
    return toks

def merge(*lists):
    tot = sum(len(l) for l in lists)
    out = []; pos = [0] * len(lists)
    for k in range(tot):
        best, bi = None, None
        for i, l in enumerate(lists):
            if pos[i] < len(l):
                frac = (pos[i] + 0.5) / len(l)
                if best is None or frac < best: best, bi = frac, i
        out.append(lists[bi][pos[bi]]); pos[bi] += 1
    return out

def frag_reads(c, n):
    i, s = divmod(n, 4); slot = i % 3; st = c.fr[n & 1]
    r = [f'ds_read_b128 {V(st["x"],4)}, v{c.ax[s]} offset:{slot*16384}',
         f'ds_read_b128 {V(st["br"],4)}, v{c.ab[s]} offset:{slot*8192}',
         f'ds_read_b128 {V(st["bi"],4)}, v{c.ab[s]} offset:{slot*8192+4096}']
    for f in range(4):
        for jj in range(2):
            r.append(f'ds_read_b64_tr_b16 {V(st["w"][f]+2*jj,2)}, v{c.aw[f][s]} offset:{slot*16384+jj*1024}')
    return r

def stats_ops(c, xreg):
    o = []
    for r in range(4):
        lo, hi = c.st_t[2*(r&1)], c.st_t[2*(r&1)+1]
        o += [f'v_lshlrev_b32 v{lo}, 16, v{xreg+r}', f'v_and_b32 v{hi}, 0xffff0000, v{xreg+r}',
              f'v_add_f32 v{c.s1[0]}, v{c.s1[0]}, v{lo}', f'v_add_f32 v{c.s1[1]}, v{c.s1[1]}, v{hi}',
              f'v_fmac_f32 v{c.s2[0]}, v{lo}, v{lo}', f'v_fmac_f32 v{c.s2[1]}, v{hi}, v{hi}']
    return o

def phase1_main(g, c, nt=''):
    v = c.v
    c.accR = v.alloc(16, 4); c.accI = v.alloc(16, 4); c.accM = [v.alloc(16, 4) for _ in range(4)]
    c.fr = [dict(x=v.alloc(4, 4), br=v.alloc(4, 4), bi=v.alloc(4, 4), w=[v.alloc(4, 4) for _ in range(4)]) for _ in range(2)]
    c.s1 = [v.alloc(), v.alloc()]; c.s2 = [v.alloc(), v.alloc()]; c.st_t = [v.alloc() for _ in range(4)]
    c.cs = [v.alloc() for _ in range(6)]
    for r in c.s1 + c.s2 + c.cs: g(f'v_mov_b32 v{r}, 0')
    g('s_mov_b32 s95, 0x3f803f80')
    dma_tok = {}
    for i in range(3):
        dma_chunk_setup(g)
        for m0, ld in dma_list(c, i, nt):
            g(m0); dma_tok[i] = g(ld)
    c.early(g, c)
    g.wait_vm(dma_tok[0])
    g('s_barrier')
    for r in frag_reads(c, 0): g(r)
    for n in range(28):
        i, s = divmod(n, 4); st = c.fr[n & 1]
        first = (n == 0)
        C = (lambda reg: '0' if first else V(reg, 16))
        mf = [f'v_mfma_f32_32x32x16_bf16 {V(c.accR,16)}, {V(st["x"],4)}, {V(st["br"],4)}, {C(c.accR)}',
              f'v_mfma_f32_32x32x16_bf16 {V(c.accI,16)}, {V(st["x"],4)}, {V(st["bi"],4)}, {C(c.accI)}']
        for f in range(4):
            mf.append(f'v_mfma_f32_32x32x16_bf16 {V(c.accM[f],16)}, {V(st["w"][f],4)}, {V(st["x"],4)}, {C(c.accM[f])}')
        pre = []
        if s == 3 and i < 6:
            g('s_waitcnt lgkmcnt(0)')
            g.wait_vm(dma_tok[i + 1])
            g('s_barrier')
        reads = frag_reads(c, n + 1) if n < 27 else []
        dmas = []
        tgt, part = None, None
        if s == 3 and i + 3 <= 6: tgt, part = i + 3, 0
        elif s < 3 and i >= 1 and i + 2 <= 6: tgt, part = i + 2, s + 1
        if tgt is not None:
            dl = dma_list(c, tgt % 3, nt)
            cuts = [0, 3, 6, 8, 10]
            if part == 0: dmas.append(lambda: dma_chunk_setup(g))
            for (m0, ld) in dl[cuts[part]:cuts[part + 1]]:
                def mk(m0=m0, ld=ld, tgt=tgt):
                    g(m0); g('s_nop 0'); dma_tok[tgt] = g(ld)
                dmas.append(mk)
        st_ops = stats_ops(c, st['x'])
        fill = merge(reads, st_ops, dmas)
        tail = []
        if s == 0:
            srcs = [st['br'], st['bi']] + st['w']
            for r in range(4):
                for k in range(6): tail.append(f'v_dot2c_f32_bf16 v{c.cs[k]}, s95, v{srcs[k]+r}')
        interleave(g, mf, fill, tail)
    for st in c.fr:
        v.free(st['x'], 4); v.free(st['br'], 4); v.free(st['bi'], 4)
        for w in st['w']: v.free(w, 4)
    for r in c.st_t: v.free(r)
    for r in c.vox + [c.vob] + c.vow + c.ax + c.ab + sum(c.aw, []): v.free(r)

def cexp(g, c, dre, dim, kreg_or_const, t0, t1, t2):
    if isinstance(kreg_or_const, float):
        k = float(kreg_or_const)
        if k == 1.0:
            g(f'v_exp_f32 v{t0}, v{c.zr2}'); g(f'v_fract_f32 v{t1}, v{c.zi_rev}')
        else:
            g(f'v_mul_f32 v{t0}, {fhex(k)}, v{c.zr2}'); g(f'v_mul_f32 v{t1}, {fhex(k)}, v{c.zi_rev}')
            g(f'v_exp_f32 v{t0}, v{t0}'); g(f'v_fract_f32 v{t1}, v{t1}')
    else:
        g(f'v_mul_f32 v{t0}, v{kreg_or_const}, v{c.zr2}'); g(f'v_mul_f32 v{t1}, v{kreg_or_const}, v{c.zi_rev}')
        g(f'v_exp_f32 v{t0}, v{t0}'); g(f'v_fract_f32 v{t1}, v{t1}')
    g(f'v_cos_f32 v{t2}, v{t1}')
    g(f'v_sin_f32 v{t1}, v{t1}')
    g(f'v_mul_f32 v{dre}, v{t0}, v{t2}')
    g(f'v_mul_f32 v{dim}, v{t0}, v{t1}')

def small_loads(g, c):
    v = c.v
    c.r_lre = v.alloc(); c.r_lim = v.alloc(); c.r_ldt = v.alloc(); c.r_b1 = v.alloc()
    t0, t1, t2 = v.alloc(), v.alloc(), v.alloc()
    sigma_of(g, t2, c.li, t0, t1)
    g('s_lshl_b32 s84, s5, 5')
    g(f'v_add_u32 v{t2}, s84, v{t2}')
    g(f'v_lshlrev_b32 v{t2}, 1, v{t2}')
    g(f'global_load_ushort v{c.r_lre}, v{t2}, s[46:47]')
    g(f'global_load_ushort v{c.r_lim}, v{t2}, s[48:49]')
    g(f'global_load_ushort v{c.r_ldt}, v{t2}, s[58:59]')
    g(f'v_and_b32 v{t0}, 127, v0')
    g('s_lshl_b32 s84, s5, 7')
    g(f'v_add_u32 v{t0}, s84, v{t0}')
    g(f'v_lshlrev_b32 v{t0}, 1, v{t0}')
    g(f'global_load_ushort v{c.r_b1}, v{t0}, s[66:67]')
    g(f's_mov_b32 s84, {OFF_X}')
    g('s_load_dword s96, s[76:77], s84')
    for r in (t0, t1, t2): v.free(r)

def early(g, c):
    v = c.v
    t = [v.alloc() for _ in range(6)]
    g(f'v_mov_b32 v{t[0]}, 0')
    g(f'v_and_b32 v{t[1]}, 0xff, v0')
    g(f'v_min_u32 v{t[1]}, 191, v{t[1]}')
    g(f's_mov_b32 s85, {L_SM}')
    g(f'v_lshl_add_u32 v{t[1]}, v{t[1]}, 2, s85')
    g(f'ds_write_b32 v{t[1]}, v{t[0]} offset:{L_CS}')
    g(f'v_and_b32 v{t[1]}, 127, v0')
    g(f'v_lshl_add_u32 v{t[1]}, v{t[1]}, 2, s85')
    g(f'v_lshlrev_b32 v{c.r_b1}, 16, v{c.r_b1}')
    g(f'ds_write_b32 v{t[1]}, v{c.r_b1} offset:{L_B1}')
    g(f'v_lshlrev_b32 v{c.r_lre}, 16, v{c.r_lre}')
    g(f'v_lshlrev_b32 v{c.r_lim}, 16, v{c.r_lim}')
    g(f'v_lshlrev_b32 v{c.r_ldt}, 16, v{c.r_ldt}')
    g(f'v_mul_f32 v{t[0]}, {fhex(LOG2E)}, v{c.r_ldt}')
    g(f'v_exp_f32 v{t[0]}, v{t[0]}')
    g('s_nop 0')
    g(f'v_cvt_pk_bf16_f32 v{t[0]}, v{t[0]}, v{t[0]}')
    g(f'v_lshlrev_b32 v{t[0]}, 16, v{t[0]}')
    c.zr2 = v.alloc(); c.zi_rev = v.alloc()
    g(f'v_mul_f32 v{c.zr2}, v{t[0]}, v{c.r_lre}')
    g(f'v_mul_f32 v{c.zr2}, {fhex(LOG2E)}, v{c.zr2}')
    g(f'v_mul_f32 v{c.zi_rev}, v{t[0]}, v{c.r_lim}')
    g(f'v_mul_f32 v{c.zi_rev}, {fhex(-0.15915494309189535)}, v{c.zi_rev}')
    c.a = v.alloc(2); c.A16 = v.alloc(2); c.A16s = v.alloc(2); c.A128 = v.alloc(2); c.A256 = v.alloc(2); c.coef = v.alloc(2)
    cexp(g, c, c.a, c.a + 1, 1.0, t[0], t[1], t[2])
    cexp(g, c, c.A16, c.A16 + 1, 16.0, t[0], t[1], t[2])
    cexp(g, c, c.A128, c.A128 + 1, 128.0, t[0], t[1], t[2])
    cexp(g, c, c.A256, c.A256 + 1, 256.0, t[0], t[1], t[2])
    g('s_lshl_b32 s84, s3, 1')
    g(f'v_add_u32 v{t[3]}, s84, v{c.lh}')
    g(f'v_lshlrev_b32 v{t[3]}, 4, v{t[3]}')
    g(f'v_cvt_f32_u32 v{t[3]}, v{t[3]}')
    cexp(g, c, c.A16s, c.A16s + 1, t[3], t[0], t[1], t[2])
    g(f'v_add_f32 v{t[0]}, -1.0, v{c.a}')
    g(f'v_mul_f32 v{t[1]}, v{c.r_lre}, v{c.r_lre}')
    g(f'v_fmac_f32 v{t[1]}, v{c.r_lim}, v{c.r_lim}')
    g(f'v_rcp_f32 v{t[1]}, v{t[1]}')
    g(f'v_mul_f32 v{t[2]}, v{t[0]}, v{c.r_lre}')
    g(f'v_add_f32 v{t[1]}, v{t[1]}, v{t[1]}')
    g(f'v_fma_f32 v{t[2]}, -v{c.a+1}, v{c.r_lim}, v{t[2]}')
    g(f'v_mul_f32 v{t[3]}, v{t[0]}, v{c.r_lim}')
    g(f'v_fmac_f32 v{t[3]}, v{c.a+1}, v{c.r_lre}')
    g(f'v_mul_f32 v{c.coef}, v{t[2]}, v{t[1]}')
    g(f'v_mul_f32 v{c.coef+1}, v{t[3]}, v{t[1]}')
    c.idf = [v.alloc(4, 4), v.alloc(4, 4)]
    g(f'v_lshrrev_b32 v{t[0]}, 3, v{c.li}')
    g(f'v_lshlrev_b32 v{t[0]}, 2, v{t[0]}')
    g(f'v_and_b32 v{t[1]}, 3, v{c.li}')
    g(f'v_add_u32 v{t[0]}, v{t[0]}, v{t[1]}')
    g(f'v_bfe_u32 v{t[1]}, v{c.li}, 2, 1')
    g(f'v_cmp_eq_u32 vcc, v{t[1]}, v{c.lh}')
    g(f'v_and_b32 v{t[1]}, 1, v{t[0]}')
    g(f'v_lshlrev_b32 v{t[1]}, 4, v{t[1]}')
    g(f'v_mov_b32 v{t[2]}, 0x3f80')
    g(f'v_lshlrev_b32 v{t[2]}, v{t[1]}, v{t[2]}')
    g(f'v_cndmask_b32 v{t[2]}, 0, v{t[2]}, vcc')
    g(f'v_lshrrev_b32 v{t[0]}, 1, v{t[0]}')
    for ks in range(2):
        for r in range(4):
            g(f'v_cmp_eq_u32 vcc, {ks*4+r}, v{t[0]}')
            g(f'v_cndmask_b32 v{c.idf[ks]+r}, 0, v{t[2]}, vcc')
    g('s_mov_b32 s98, s60'); g('s_mov_b32 s99, s61')
    g('s_mov_b32 s100, s70'); g('s_mov_b32 s101, s71')
    g(f'v_sub_u32 v{t[0]}, s4, v{c.lh}')
    for jj in range(8):
        g(f'v_cmp_lt_i32 s[{60+2*jj}:{61+2*jj}], {2*jj}, v{t[0]}')
    g('s_waitcnt lgkmcnt(0)')
    g('s_mul_i32 s96, s96, 0x9E3779B1')
    g('s_add_u32 s96, s96, 0x7F4A7C15')
    for k in t: v.free(k)
    for k in (c.r_lre, c.r_lim, c.r_ldt, c.r_b1): v.free(k)

def phase1_epiA(g, c):
    v = c.v
    t = [v.alloc() for _ in range(8)]
    g(f's_mov_b32 s85, {L_SM}')
    g(f'v_lshl_add_u32 v{t[0]}, v{c.li}, 2, s85')
    g(f'v_lshl_add_u32 v{t[1]}, v{c.sg}, 2, s85')
    g(f'ds_add_f32 v{t[0]}, v{c.cs[0]} offset:{L_CS}')
    g(f'ds_add_f32 v{t[0]}, v{c.cs[1]} offset:{L_CS+128}')
    for f in range(4):
        g(f'ds_add_f32 v{t[1]}, v{c.cs[2+f]} offset:{L_CS+256+128*f}')
    g(f'v_add_f32 v{c.s1[0]}, v{c.s1[0]}, v{c.s1[1]}')
    g(f'v_add_f32 v{c.s2[0]}, v{c.s2[0]}, v{c.s2[1]}')
    g(f'v_mov_b32 v{c.s1[1]}, v{c.s1[0]}')
    g(f'v_mov_b32 v{c.s2[1]}, v{c.s2[0]}')
    g('s_nop 1')
    g(f'v_permlane32_swap_b32 v{c.s1[0]}, v{c.s1[1]}')
    g(f'v_permlane32_swap_b32 v{c.s2[0]}, v{c.s2[1]}')
    g(f'v_add_f32 v{c.s1[0]}, v{c.s1[0]}, v{c.s1[1]}')
    g(f'v_add_f32 v{c.s2[0]}, v{c.s2[0]}, v{c.s2[1]}')
    c.mean = v.alloc(2); c.rstd = c.mean + 1
    c.RR = v.alloc(2)
    g(f'v_mul_f32 v{c.mean}, {fhex(1/448)}, v{c.s1[0]}')
    g(f'v_mul_f32 v{t[2]}, {fhex(1/448)}, v{c.s2[0]}')
    g(f'v_fma_f32 v{t[2]}, -v{c.mean}, v{c.mean}, v{t[2]}')
    g(f'v_max_f32 v{t[2]}, 0, v{t[2]}')
    g(f'v_add_f32 v{t[3]}, {fhex(1e-5)}, v{t[2]}')
    g(f'v_rsq_f32 v{c.rstd}, v{t[3]}')
    g('s_nop 0')
    g(f'v_mul_f32 v{t[3]}, v{c.rstd}, v{c.rstd}')
    g(f'v_mul_f32 v{t[3]}, v{t[3]}, v{t[2]}')
    g(f'v_add_f32 v{t[3]}, {fhex(1e-5)}, v{t[3]}')
    g(f'v_rsq_f32 v{t[3]}, v{t[3]}')
    g(f'v_mul_f32 v{t[4]}, v{c.mean}, v{c.rstd}')
    g(f'v_mul_f32 v{c.RR}, v{c.rstd}, v{t[3]}')
    g(f'v_mul_f32 v{c.RR+1}, v{c.RR}, v{c.mean}')
    g('s_lshl_b32 s84, s3, 8'); g(f's_add_u32 s84, s84, {L_SM}')
    g(f'v_lshl_add_u32 v{t[5]}, v{c.pi}, 2, s84')
    g(f'ds_write_b32 v{t[5]}, v{c.rstd} offset:{L_STAT}')
    last = g(f'ds_write_b32 v{t[5]}, v{t[4]} offset:{L_STAT+128}')
    g(f'v_lshlrev_b32 v{t[6]}, 3, v{c.pi}')
    g('s_lshl_b32 s84, s4, 7'); g('s_lshl_b32 s85, s3, 5'); g('s_add_u32 s84, s84, s85'); g('s_lshl_b32 s84, s84, 3')
    g(f's_add_u32 s84, s84, {OFF_ST}')
    g('s_cmp_eq_u32 s5, 0')
    g(f's_cselect_b32 s84, s84, {WS_USED}')
    g(f'buffer_store_dwordx2 {V(c.mean,2)}, v{t[6]}, s[28:31], s84 offen sc1')
    g.wait_ds(last)
    g('s_barrier')
    c.rs = v.alloc(16, 4); c.mr = v.alloc(16, 4); c.csri = v.alloc(2)
    g('s_lshl_b32 s84, s3, 8'); g(f's_add_u32 s84, s84, {L_SM}')
    g(f'v_lshl_add_u32 v{t[5]}, v{c.lh}, 6, s84')
    for k in range(4): g(f'ds_read_b128 {V(c.rs+4*k,4)}, v{t[5]} offset:{L_STAT+16*k}')
    for k in range(4): g(f'ds_read_b128 {V(c.mr+4*k,4)}, v{t[5]} offset:{L_STAT+128+16*k}')
    g(f'ds_read_b32 v{c.csri}, v{t[0]} offset:{L_CS}')
    g(f'ds_read_b32 v{c.csri+1}, v{t[0]} offset:{L_CS+128}')
    for k in t: v.free(k)
    for k in c.s1 + c.s2 + c.cs: v.free(k)

def cmad(d, a, x, e, t):
    return [f'v_fma_f32 v{t[0]}, v{a[0]}, v{x[0]}, v{e[0]}', f'v_fma_f32 v{t[1]}, v{a[0]}, v{x[1]}, v{e[1]}',
            f'v_fma_f32 v{t[0]}, -v{a[1]}, v{x[1]}, v{t[0]}', f'v_fma_f32 v{d[1]}, v{a[1]}, v{x[0]}, v{t[1]}', f'v_mov_b32 v{d[0]}, v{t[0]}']

def phase1_epiB(g, c):
    v = c.v
    K = v.alloc(2); tp = [v.alloc(2) for _ in range(3)]
    cr, ci = c.coef, c.coef + 1
    g(f'v_mul_f32 v{K}, v{cr}, v{c.csri}'); g(f'v_fmac_f32 v{K}, v{ci}, v{c.csri+1}')
    g(f'v_mul_f32 v{K+1}, v{ci}, v{c.csri}'); g(f'v_fma_f32 v{K+1}, -v{cr}, v{c.csri+1}, v{K+1}')
    LO, HI = 'op_sel_hi:[1,0]', 'op_sel:[0,1] op_sel_hi:[1,1]'
    for j in range(0, 16, 2):
        R, I_, rs, mr = V(c.accR + j, 2), V(c.accI + j, 2), V(c.rs + j, 2), V(c.mr + j, 2)
        t0, t1, t2 = V(tp[0], 2), V(tp[1], 2), V(tp[2], 2)
        cf, KK = V(c.coef, 2), V(K, 2)
        g(f'v_pk_mul_f32 {t0}, {R}, {cf} op_sel_hi:[1,0]')
        g(f'v_pk_mul_f32 {t1}, {R}, {cf} op_sel:[0,1] op_sel_hi:[1,1]')
        g(f'v_pk_fma_f32 {t0}, {I_}, {cf}, {t0} op_sel:[0,1,0] op_sel_hi:[1,1,1]')
        g(f'v_pk_fma_f32 {t1}, {I_}, {cf}, {t1} op_sel_hi:[1,0,1] neg_lo:[0,1,0] neg_hi:[0,1,0]')
        g(f'v_pk_mul_f32 {R}, {mr}, {KK} op_sel_hi:[1,0]')
        g(f'v_pk_mul_f32 {I_}, {mr}, {KK} op_sel:[0,1] op_sel_hi:[1,1]')
        g(f'v_pk_fma_f32 {R}, {rs}, {t0}, {R} neg_lo:[0,0,1] neg_hi:[0,0,1]')
        g(f'v_pk_fma_f32 {I_}, {rs}, {t1}, {I_} neg_lo:[0,0,1] neg_hi:[0,0,1]')
    ea, eb = tp[0], tp[1]
    ar, ai = c.a, c.a + 1
    prev = (c.accR, c.accI)
    for j in range(1, 16):
        d = ea if (j & 1) else eb
        g(f'v_fma_f32 v{d}, v{ar}, v{prev[0]}, v{c.accR+j}')
        g(f'v_fma_f32 v{d+1}, v{ar}, v{prev[1]}, v{c.accI+j}')
        g(f'v_fma_f32 v{d}, -v{ai}, v{prev[1]}, v{d}')
        g(f'v_fma_f32 v{d+1}, v{ai}, v{prev[0]}, v{d+1}')
        prev = (d, d + 1)
    c.Eown = ea
    assert prev[0] == ea
    ta, tb = v.alloc(), v.alloc()
    g('s_lshl_b32 s84, s3, 9')
    g(f'v_lshlrev_b32 v{ta}, 8, v{c.lh}')
    g(f'v_lshl_add_u32 v{ta}, v{c.li}, 3, v{ta}')
    g(f'v_add_u32 v{ta}, s84, v{ta}')
    g(f'v_add_u32 v{ta}, {L_SM}, v{ta}')
    last = g(f'ds_write_b64 v{ta}, {V(c.Eown,2)} offset:{L_SEG}')
    g.wait_ds(last)
    g('s_barrier')
    Es = [v.alloc(2) for _ in range(7)]
    g(f'v_lshlrev_b32 v{tb}, 3, v{c.li}')
    g(f'v_add_u32 v{tb}, {L_SM}, v{tb}')
    for s in range(6): g(f'ds_read_b64 {V(Es[s],2)}, v{tb} offset:{L_SEG+256*s}')
    g(f'v_add_u32 v{tb}, s84, v{tb}')
    g(f'ds_read_b64 {V(Es[6],2)}, v{tb} offset:{L_SEG}')
    c.P = v.alloc(2)
    g(f'v_mov_b32 v{c.P}, 0'); g(f'v_mov_b32 v{c.P+1}, 0')
    P = (c.P, c.P + 1); A16 = (c.A16, c.A16 + 1); T = (tp[2], tp[2] + 1)
    for s in range(6):
        g(f's_cmp_gt_u32 s3, {s//2}')
        g('s_cselect_b64 exec, -1, 0')
        for x in cmad(P, A16, P, (Es[s], Es[s] + 1), T): g(x)
    g('s_mov_b32 exec_lo, 0'); g('s_mov_b32 exec_hi, -1')
    for x in cmad(P, A16, P, (Es[6], Es[6] + 1), T): g(x)
    g('s_mov_b64 exec, -1')
    G4 = v.alloc(4, 4)
    for x in cmad((G4, G4 + 1), A16, P, (c.Eown, c.Eown + 1), T): g(x)
    g(f'v_mov_b32 v{G4+2}, s96'); g(f'v_mov_b32 v{G4+3}, s96')
    g(f'v_lshlrev_b32 v{ta}, 4, v{c.li}')
    g(f'v_cmp_eq_u32 vcc, 1, v{c.lh}')
    g(f'v_mov_b32 v{tb}, {WS_USED}')
    g(f'v_cndmask_b32 v{ta}, v{tb}, v{ta}, vcc')
    g('s_lshl_b32 s84, s5, 4'); g('s_add_u32 s84, s84, s4'); g('s_lshl_b32 s84, s84, 9')
    g(f's_add_u32 s84, s84, {OFF_EG}')
    g('s_cmp_eq_u32 s3, 3')
    g(f's_cselect_b32 s84, s84, {WS_USED}')
    g(f'buffer_store_dwordx4 {V(G4,4)}, v{ta}, s[28:31], s84 offen sc1')
    g('s_nop 1')
    v.free(G4, 4); v.free(ta); v.free(tb); v.free(K, 2)
    for e in Es: v.free(e, 2)
    v.free(tp[1], 2); v.free(tp[2], 2)
    v.free(c.rs, 16); v.free(c.mr, 16); v.free(c.csri, 2)

def eg_loads(g, c, first=True):
    v = c.v
    if first:
        c.EG = [v.alloc(4, 4) for _ in range(8)]
        c.egoff = v.alloc(2)
        g(f'v_lshlrev_b32 v{c.egoff}, 9, v{c.lh}')
        g(f'v_lshl_add_u32 v{c.egoff}, v{c.li}, 4, v{c.egoff}')
        g(f'v_add_u32 v{c.egoff+1}, 4096, v{c.egoff}')
    g('s_lshl_b32 s85, s5, 13')
    g(f's_add_u32 s85, s85, {OFF_EG}')
    for jj in range(8):
        g(f'buffer_load_dwordx4 {V(c.EG[jj],4)}, v{c.egoff + jj//4}, s[28:31], s85 offen offset:{(jj%4)*1024} sc1')

def gelu_frag(g, c, f, ktmp):
    v = c.v
    cs, bb, tq, pk = ktmp
    acc = c.accM[f]
    toks = []
    for Q in range(2):
        for k in range(2):
            g(f'ds_read_b128 {V(cs+8*Q+4*k,4)}, v{c.vh32} offset:{L_CS+256+128*f+64*Q+16*k}')
            g(f'ds_read_b128 {V(bb+8*Q+4*k,4)}, v{c.vh32} offset:{L_B1+128*f+64*Q+16*k}')
    RR, CC = V(c.RR, 2), V(c.gc, 2)
    P = range(0, 16, 2)
    for j in P: g(f'v_pk_fma_f32 {V(bb+j,2)}, {V(cs+j,2)}, {RR}, {V(bb+j,2)} op_sel:[0,1,0] op_sel_hi:[1,1,1] neg_lo:[0,1,0] neg_hi:[0,1,0]')
    for j in P: g(f'v_pk_fma_f32 {V(acc+j,2)}, {V(acc+j,2)}, {RR}, {V(bb+j,2)} op_sel_hi:[1,0,1]')
    for j in P: g(f'v_pk_mul_f32 {V(tq+j,2)}, {V(acc+j,2)}, {V(acc+j,2)}')
    for j in P: g(f'v_pk_fma_f32 {V(tq+j,2)}, {V(tq+j,2)}, {CC}, {CC} op_sel:[0,0,1] op_sel_hi:[1,0,1]')
    for j in P: g(f'v_pk_mul_f32 {V(tq+j,2)}, {V(tq+j,2)}, {V(acc+j,2)}')
    for j in range(16): g(f'v_exp_f32 v{tq+j}, v{tq+j}')
    for j in P: g(f'v_pk_add_f32 {V(tq+j,2)}, {V(tq+j,2)}, 1.0 op_sel_hi:[1,0]')
    for j in range(16): g(f'v_rcp_f32 v{tq+j}, v{tq+j}')
    for j in P: g(f'v_pk_mul_f32 {V(tq+j,2)}, {V(tq+j,2)}, {V(acc+j,2)}')
    for j in P: g(f'v_cvt_pk_bf16_f32 v{pk+j//2}, v{tq+j}, v{tq+j+1}')
    for Q in range(2):
        g(f's_add_u32 s84, s79, {(2*f+Q)*1024}')
        toks.append(g(f'buffer_store_dwordx4 {V(pk+4*Q,4)}, v{c.vl16}, s[28:31], s84 offen sc1'))
    return toks

def flag_store(g, c, base, after_tok):
    v = c.v
    t0, t1 = v.alloc(), v.alloc()
    g('s_lshr_b32 s84, s3, 1'); g('s_lshl_b32 s85, s4, 1'); g('s_add_u32 s84, s84, s85'); g('s_lshl_b32 s84, s84, 7')
    g('s_and_b32 s85, s3, 1'); g('s_lshl_b32 s78, s5, 1'); g('s_add_u32 s85, s85, s78'); g('s_lshl_b32 s85, s85, 2')
    g('s_add_u32 s84, s84, s85'); g(f's_add_u32 s84, s84, {base}')
    g(f'v_mov_b32 v{t0}, s96')
    g(f'v_cmp_eq_u32 vcc, 0, v{c.lane}')
    g(f'v_mov_b32 v{t1}, {WS_USED}')
    g(f'v_cndmask_b32 v{t1}, v{t1}, 0, vcc')
    g.wait_vm(after_tok)
    tok = g(f'buffer_store_dword v{t0}, v{t1}, s[28:31], s84 offen sc1')
    v.free(t0); v.free(t1)
    return tok

def phase1_gelu(g, c, hooks=None):
    v = c.v
    c.vh32 = v.alloc(); c.vl16 = v.alloc(); c.gc = v.alloc(2)
    g(f'v_lshlrev_b32 v{c.vh32}, 5, v{c.lh}')
    g(f'v_add_u32 v{c.vh32}, {L_SM}, v{c.vh32}')
    g(f'v_lshlrev_b32 v{c.vl16}, 4, v{c.lane}')
    C1 = -2.0 * LOG2E * 0.7978845608028654
    g(f'v_mov_b32 v{c.gc}, {fhex(C1*0.044715)}')
    g(f'v_mov_b32 v{c.gc+1}, {fhex(C1)}')
    g('s_lshl_b32 s79, s4, 2'); g('s_add_u32 s79, s79, s3'); g('s_mul_i32 s79, s79, 112'); g('s_lshl_b32 s84, s5, 3')
    g('s_add_u32 s79, s79, s84'); g('s_lshl_b32 s79, s79, 10')
    if OFF_HM: g(f's_add_u32 s79, s79, {OFF_HM}')
    ktmp = (v.alloc(16, 4), v.alloc(16, 4), v.alloc(16, 4), v.alloc(8, 4))
    last = None
    for f in range(4):
        last = gelu_frag(g, c, f, ktmp)[-1]
        if hooks and f in hooks: hooks[f]()
        v.free(c.accM[f], 16)
    for r, n in zip(ktmp, (16, 16, 16, 8)): v.free(r, n)
    v.free(c.vh32); v.free(c.gc, 2); v.free(c.RR, 2)
    return last

def phase1_epiD(g, c):
    v = c.v
    T = v.alloc(2); G = v.alloc(2); U = v.alloc(2)
    g.label('L_egchk')
    g('s_mov_b64 s[80:81], 0')
    for jj in range(8):
        g(f'v_cmp_ne_u32 vcc, s96, v{c.EG[jj]+2}')
        g(f's_and_b64 vcc, vcc, s[{60+2*jj}:{61+2*jj}]')
        g('s_or_b64 s[80:81], s[80:81], vcc')
    g('s_cmp_eq_u64 s[80:81], 0')
    g('s_cbranch_scc1 L_egok')
    g.save()
    g('s_add_u32 s82, s82, 1')
    g('s_cmp_gt_u32 s82, 0x8000')
    g('s_cbranch_scc1 L_egok')
    g('s_sleep 1')
    eg_loads(g, c, first=False)
    g('s_waitcnt vmcnt(0)')
    g('s_branch L_egchk')
    g.restore()
    g.label('L_egok')
    g(f'v_mov_b32 v{G}, 0'); g(f'v_mov_b32 v{G+1}, 0')
    A256 = (c.A256, c.A256 + 1); A128 = (c.A128, c.A128 + 1)
    for jj in range(8):
        g(f's_mov_b64 exec, s[{60+2*jj}:{61+2*jj}]')
        for x in cmad((G, G + 1), A256, (G, G + 1), (c.EG[jj], c.EG[jj] + 1), (T, T + 1)): g(x)
    g('s_and_b32 s84, s4, 1')
    g('s_cmp_eq_u32 s84, 1')
    g('s_cselect_b32 exec_lo, 0, -1')
    g('s_cselect_b32 exec_hi, -1, 0')
    g(f'v_mul_f32 v{T}, v{A128[0]}, v{G}'); g(f'v_mul_f32 v{T+1}, v{A128[0]}, v{G+1}')
    g(f'v_fma_f32 v{T}, -v{A128[1]}, v{G+1}, v{T}'); g(f'v_fma_f32 v{G+1}, v{A128[1]}, v{G}, v{T+1}'); g(f'v_mov_b32 v{G}, v{T}')
    g('s_mov_b64 exec, -1')
    g(f'v_mov_b32 v{T}, v{G}'); g(f'v_mov_b32 v{T+1}, v{G+1}')
    g('s_nop 1')
    g(f'v_permlane32_swap_b32 v{G}, v{T}')
    g(f'v_permlane32_swap_b32 v{G+1}, v{T+1}')
    g(f'v_add_f32 v{G}, v{G}, v{T}'); g(f'v_add_f32 v{G+1}, v{G+1}, v{T+1}')
    for x in cmad((U, U + 1), (c.A16s, c.A16s + 1), (G, G + 1), (c.P, c.P + 1), (T, T + 1)): g(x)
    if getattr(c, 'dbg_carry', False):
        D4 = v.alloc(4, 4); dv = v.alloc()
        g(f'v_mov_b32 v{D4}, v{U}'); g(f'v_mov_b32 v{D4+1}, v{U+1}'); g(f'v_mov_b32 v{D4+2}, v{c.A16s}'); g(f'v_mov_b32 v{D4+3}, v{c.A16s+1}')
        g(f'v_lshlrev_b32 v{dv}, 4, v0')
        g('s_lshl_b32 s84, s4, 4'); g('s_add_u32 s84, s84, s5'); g('s_lshl_b32 s84, s84, 12'); g(f's_add_u32 s84, s84, {OFF_DBG}')
        g(f'buffer_store_dwordx4 {V(D4,4)}, v{dv}, s[28:31], s84 offen')
        g('s_nop 1')
        v.free(D4, 4); v.free(dv)
    ar, ai = c.a, c.a + 1
    prev = (U, U + 1)
    for j in range(16):
        R, I_ = c.accR + j, c.accI + j
        g(f'v_fmac_f32 v{R}, v{ar}, v{prev[0]}')
        g(f'v_fmac_f32 v{I_}, v{ar}, v{prev[1]}')
        g(f'v_fma_f32 v{R}, -v{ai}, v{prev[1]}, v{R}')
        g(f'v_fmac_f32 v{I_}, v{ai}, v{prev[0]}')
        prev = (R, I_)
    for e in c.EG: v.free(e, 4)
    v.free(c.egoff, 2)
    pk = v.alloc(16, 4); D = [v.alloc(16, 4), v.alloc(16, 4)]
    for part, acc in enumerate((c.accR, c.accI)):
        for j in range(0, 16, 2): g(f'v_cvt_pk_bf16_f32 v{pk+8*part+j//2}, v{acc+j}, v{acc+j+1}')
    for part in range(2):
        g(f'v_mfma_f32_32x32x16_bf16 {V(D[part],16)}, {V(pk+8*part,4)}, {V(c.idf[0],4)}, 0')
    for part in range(2):
        g(f'v_mfma_f32_32x32x16_bf16 {V(D[part],16)}, {V(pk+8*part+4,4)}, {V(c.idf[1],4)}, {V(D[part],16)}')
    g('s_lshl_b32 s78, s4, 2'); g('s_add_u32 s78, s78, s3'); g('s_mul_i32 s78, s78, 56'); g('s_lshl_b32 s84, s5, 1')
    g('s_add_u32 s78, s78, s84'); g('s_lshl_b32 s78, s78, 10'); g(f's_add_u32 s78, s78, {OFF_HS}')
    last = None
    for part in range(2):
        for j in range(0, 16, 2): g(f'v_cvt_pk_bf16_f32 v{pk+8*part+j//2}, v{D[part]+j}, v{D[part]+j+1}')
        for Q in range(2):
            g(f's_add_u32 s84, s78, {(28*part+Q)*1024}')
            last = g(f'buffer_store_dwordx4 {V(pk+8*part+4*Q,4)}, v{c.vl16}, s[28:31], s84 offen sc1')
    v.free(pk, 16); v.free(D[0], 16); v.free(D[1], 16)
    v.free(T, 2); v.free(G, 2); v.free(U, 2)
    v.free(c.accR, 16); v.free(c.accI, 16)
    return last
```

```python
from asmlib import *
from consts import *
from phase1 import interleave, merge

W2_WAVE = 36864
NSLOT = 9

def w2_setup(g, c):
    v = c.v
    L, I, H = c.lane, c.li, c.lh
    t = [v.alloc() for _ in range(6)]
    c.vo2 = v.alloc(); c.voc = v.alloc()
    c.a2 = [v.alloc(), v.alloc()]; c.ac = [v.alloc(), v.alloc()]
    g('s_mov_b32 s84, 896')
    g(f'v_lshrrev_b32 v{t[0]}, 3, v{L}')
    g(f'v_mul_lo_u32 v{t[0]}, v{t[0]}, s84')
    g(f'v_bfe_u32 v{t[1]}, v{L}, 4, 1')
    g(f'v_lshlrev_b32 v{t[1]}, 2, v{t[1]}')
    g(f'v_and_b32 v{t[2]}, 7, v{L}')
    g(f'v_xor_b32 v{t[1]}, v{t[1]}, v{t[2]}')
    g(f'v_lshl_add_u32 v{c.vo2}, v{t[1]}, 4, v{t[0]}')
    g(f'v_lshrrev_b32 v{t[0]}, 2, v{L}')
    g(f'v_mul_lo_u32 v{t[0]}, v{t[0]}, s84')
    g(f'v_lshrrev_b32 v{t[1]}, 4, v{L}')
    g(f'v_and_b32 v{t[2]}, 3, v{L}')
    g(f'v_xor_b32 v{t[1]}, v{t[1]}, v{t[2]}')
    g(f'v_lshl_add_u32 v{c.voc}, v{t[1]}, 4, v{t[0]}')
    g(f's_mul_i32 s44, s3, {W2_WAVE}')
    g(f'v_bfe_u32 v{t[0]}, v{L}, 2, 2')
    g(f'v_lshl_add_u32 v{t[1]}, v{H}, 3, v{t[0]}')
    g(f'v_lshlrev_b32 v{t[1]}, 7, v{t[1]}')
    g(f'v_bfe_u32 v{t[2]}, v{L}, 4, 1')
    g(f'v_lshlrev_b32 v{t[2]}, 1, v{t[2]}')
    g(f'v_bfe_u32 v{t[3]}, v{L}, 1, 1')
    g(f'v_add_u32 v{t[2]}, v{t[2]}, v{t[3]}')
    g(f'v_lshl_add_u32 v{t[1]}, v{t[2]}, 4, v{t[1]}')
    g(f'v_and_b32 v{t[3]}, 1, v{L}')
    g(f'v_lshl_add_u32 v{t[1]}, v{t[3]}, 3, v{t[1]}')
    g(f'v_add_u32 v{t[1]}, s44, v{t[1]}')
    g(f'v_lshrrev_b32 v{t[0]}, 1, v{t[0]}')
    for cf in range(2):
        g(f'v_xor_b32 v{t[2]}, {cf}, v{t[0]}')
        g(f'v_lshl_add_u32 v{c.a2[cf]}, v{t[2]}, 6, v{t[1]}')
    g(f'v_lshlrev_b32 v{t[0]}, 6, v{I}')
    g(f'v_add_u32 v{t[0]}, s44, v{t[0]}')
    g(f'v_bfe_u32 v{t[1]}, v{I}, 2, 2')
    g(f'v_xor_b32 v{t[1]}, v{t[1]}, v{H}')
    for ks2 in range(2):
        g(f'v_xor_b32 v{t[2]}, {2*ks2}, v{t[1]}')
        g(f'v_lshl_add_u32 v{c.ac[ks2]}, v{t[2]}, 4, v{t[0]}')
    g(f's_mul_i32 s45, s3, {448*896}'); g('s_lshl_b32 s84, s7, 7'); g('s_add_u32 s45, s45, s84')
    g(f's_mul_i32 s46, s7, {64*896}'); g('s_and_b32 s84, s3, 1'); g('s_mul_i32 s84, s84, 448'); g('s_add_u32 s46, s46, s84')
    g('s_mul_i32 s84, s9, 7'); g('s_add_u32 s84, s84, 1'); g('s_lshr_b32 s84, s84, 1')
    g('s_lshl_b32 s47, s7, 1'); g('s_add_u32 s47, s47, s84')
    g('s_cmp_ge_u32 s47, 14'); g('s_cselect_b32 s84, 14, 0'); g('s_sub_u32 s47, s47, s84')
    g('s_mov_b32 s48, s8')
    g('s_mov_b32 s49, s47'); g('s_mov_b32 s50, s48')
    for k in t: v.free(k)

def unit_dma(g, c, pos):
    slot = pos % NSLOT
    toks = []
    if pos < 14:
        g(f's_mul_i32 s84, s49, {32*896}'); g('s_add_u32 s84, s84, s45')
        g('s_add_u32 s49, s49, 1'); g('s_cmp_eq_u32 s49, 14'); g('s_cselect_b32 s49, 0, s49')
        for mm in range(4):
            g(f's_add_u32 m0, s44, {slot*4096 + mm*1024}')
            if mm: g(f's_add_u32 s84, s84, {8*896}')
            else: g('s_nop 0')
            toks.append(g(f'buffer_load_dwordx4 v{c.vo2}, s[36:39], s84 offen lds'))
    else:
        g('s_lshl_b32 s84, s50, 6'); g('s_add_u32 s84, s84, s46')
        g('s_add_u32 s50, s50, 1'); g('s_cmp_eq_u32 s50, 7'); g('s_cselect_b32 s50, 0, s50')
        for mm in range(4):
            g(f's_add_u32 m0, s44, {slot*4096 + mm*1024}')
            if mm: g(f's_add_u32 s84, s84, {16*896}')
            else: g('s_nop 0')
            toks.append(g(f'buffer_load_dwordx4 v{c.voc}, s[32:35], s84 offen lds'))
    c.utok[pos] = toks[-1]

def unit_reads(c, pos, dst, kind):
    slot = pos % NSLOT
    out = []
    for ks2 in range(2):
        for cf in range(2):
            b = dst(ks2, cf)
            if pos < 14:
                for jj in range(2):
                    out.append(f'ds_read_b64_tr_b16 {rng(kind, b+2*jj, 2)}, v{c.a2[cf]} offset:{slot*4096 + ks2*2048 + jj*512}')
            else:
                out.append(f'ds_read_b128 {rng(kind, b, 4)}, v{c.ac[ks2]} offset:{slot*4096 + cf*2048}')
    return out

def unit_copy(g, c, pos):
    assert pos < 16
    g.wait_vm(c.utok[pos])
    last = None
    for r in unit_reads(c, pos, lambda ks2, cf: pos*16 + ks2*8 + cf*4, 'a'): last = g(r)
    if pos + NSLOT <= 20:
        g.wait_ds(last)
        unit_dma(g, c, pos + NSLOT)

def poll_flags(g, c, base, name, cnt_s):
    v = c.v
    t0, t1 = c.pollv
    g(f's_lshl_b32 s84, s6, 7'); g(f's_add_u32 s84, s84, {base}')
    g(f's_mov_b32 s{cnt_s}, 0')
    g.label(f'L_{name}_chk')
    g(f'buffer_load_dword v{t1}, v{t0}, s[28:31], s84 offen sc1')
    g('s_waitcnt vmcnt(0)')
    g(f'v_cmp_ne_u32 vcc, s96, v{t1}')
    g('s_and_b64 vcc, vcc, s[52:53]')
    g(f's_cbranch_vccz L_{name}_ok')
    g(f's_add_u32 s{cnt_s}, s{cnt_s}, 1')
    g(f's_cmp_gt_u32 s{cnt_s}, 0x8000')
    g(f's_cbranch_scc1 L_{name}_ok')
    g('s_sleep 1')
    g(f's_branch L_{name}_chk')
    g.label(f'L_{name}_ok')

def poll_issue(g, c, base):
    t0, t1 = c.pollv
    g(f's_lshl_b32 s57, s6, 7'); g(f's_add_u32 s57, s57, {base}')
    g(f'buffer_load_dword v{t1}, v{t0}, s[28:31], s57 offen sc1')

def poll_check(g, c, name):
    t0, t1 = c.pollv
    g('s_mov_b32 s84, 0')
    g.label(f'L_{name}_chk')
    g(f'v_cmp_ne_u32 vcc, s96, v{t1}')
    g('s_and_b64 vcc, vcc, s[52:53]')
    g(f's_cbranch_vccz L_{name}_ok')
    g.save()
    g('s_add_u32 s84, s84, 1')
    g('s_cmp_gt_u32 s84, 0x8000')
    g(f's_cbranch_scc1 L_{name}_ok')
    g('s_sleep 1')
    g(f'buffer_load_dword v{t1}, v{t0}, s[28:31], s57 offen sc1')
    g('s_waitcnt vmcnt(0)')
    g(f's_branch L_{name}_chk')
    g.restore()
    g.label(f'L_{name}_ok')

def phase2_main(g, c, depth=6, fused=True):
    v = c.v
    acc = {k: [[v.alloc(16, 4) for _ in range(2)] for _ in range(2)] for k in 'ms'}
    c.acc2 = acc
    ab = [[v.alloc(4, 4), v.alloc(4, 4)] for _ in range(depth)]
    wl = [[v.alloc(4, 4), v.alloc(4, 4)] for _ in range(2)]
    voA = v.alloc(); voM1 = v.alloc(); voS1 = v.alloc()
    g(f'v_lshlrev_b32 v{voA}, 4, v{c.lane}')
    g(f'v_add_u32 v{voM1}, {112*1024}, v{voA}')
    g(f'v_add_u32 v{voS1}, {56*1024}, v{voA}')
    g('s_lshl_b32 s54, s6, 1'); g('s_mul_i32 s84, s54, 112'); g('s_mul_i32 s85, s3, 28'); g('s_add_u32 s84, s84, s85'); g('s_lshl_b32 s84, s84, 10')
    g('s_mul_i32 s55, s54, 56'); g('s_mul_i32 s85, s3, 14'); g('s_add_u32 s55, s55, s85'); g('s_lshl_b32 s55, s55, 10'); g(f's_add_u32 s55, s55, {OFF_HS}')
    g(f's_add_u32 s54, s84, {OFF_HM}')
    g('s_mov_b32 s49, s47'); g('s_mov_b32 s50, s48')
    steps = [(pos, ks2) for pos in range(21) for ks2 in range(2)]
    def a_load(n):
        pos, ks2 = steps[n]
        if ks2 == 0:
            if pos < 14:
                g('s_lshl_b32 s56, s49, 11'); g('s_add_u32 s56, s56, s54')
                g('s_add_u32 s49, s49, 1'); g('s_cmp_eq_u32 s49, 14'); g('s_cselect_b32 s49, 0, s49')
            else:
                g('s_lshl_b32 s56, s50, 11'); g('s_add_u32 s56, s56, s55')
                g('s_add_u32 s50, s50, 1'); g('s_cmp_eq_u32 s50, 7'); g('s_cselect_b32 s50, 0, s50')
        b = ab[n % depth]
        v1 = voM1 if pos < 14 else voS1
        g(f'buffer_load_dwordx4 {V(b[0],4)}, v{voA}, s[28:31], s56 offen offset:{ks2*1024} sc1')
        g(f'buffer_load_dwordx4 {V(b[1],4)}, v{v1}, s[28:31], s56 offen offset:{ks2*1024} sc1')
    def w_reads(n):
        pos, ks2 = steps[n]
        slot = pos % NSLOT
        r = []
        for cf in range(2):
            r.append(f'ds_read_b128 {V(wl[n&1][cf],4)}, v{c.ac[ks2]} offset:{slot*4096 + cf*2048}')
        return r
    first_s = 28
    if fused: poll_flags(g, c, OFF_FM, 'pm', 85)
    for n in range(depth): a_load(n)
    for pos in range(16, 21): g.wait_vm(c.utok[pos])
    polled_s = False
    for n, (pos, ks2) in enumerate(steps):
        k = 'm' if pos < 14 else 's'
        firstk = (n == 0) or (n == first_s)
        b = ab[n % depth]
        mf = []
        for rf in range(2):
            for cf in range(2):
                W = A(pos*16 + ks2*8 + cf*4, 4) if pos < 16 else V(wl[n & 1][cf], 4)
                C = '0' if firstk else V(acc[k][rf][cf], 16)
                mf.append(f'v_mfma_f32_32x32x16_bf16 {V(acc[k][rf][cf],16)}, {V(b[rf],4)}, {W}, {C}')
        fill = []
        if n + 1 < len(steps) and steps[n + 1][0] >= 16: fill += w_reads(n + 1)
        g(mf[0]); g(mf[1])
        for f in fill: g(f)
        g(mf[2]); g(mf[3])
        nn = n + depth
        if nn < len(steps):
            if nn == first_s - 8 and fused: poll_issue(g, c, OFF_FS)
            if nn == first_s and fused:
                poll_check(g, c, 'ps')
                c.after_hs_poll(g, c)
            a_load(nn)
    for b in ab: v.free(b[0], 4); v.free(b[1], 4)
    for b in wl: v.free(b[0], 4); v.free(b[1], 4)
    v.free(voA); v.free(voM1); v.free(voS1)

def phase2_final(g, c):
    v = c.v
    acc = c.acc2
    xs = v.alloc(16, 4); st = v.alloc(32, 4); dk = v.alloc(); b2 = v.alloc()
    t = [v.alloc() for _ in range(4)]
    g('s_lshl_b32 s58, s6, 6'); g('s_lshr_b32 s84, s3, 1'); g('s_lshl_b32 s84, s84, 5'); g('s_add_u32 s58, s58, s84')
    g('s_lshl_b32 s59, s7, 6'); g('s_and_b32 s84, s3, 1'); g('s_lshl_b32 s84, s84, 5'); g('s_add_u32 s59, s59, s84')
    g(f'v_add_u32 v{t[0]}, s59, v{c.li}'); g(f'v_lshlrev_b32 v{t[0]}, 1, v{t[0]}')
    g(f'global_load_ushort v{dk}, v{t[0]}, s[98:99]')
    g(f'global_load_ushort v{b2}, v{t[0]}, s[100:101]')
    g(f'v_mul_u32_u24 v{t[1]}, {16*896}, v{c.lh}'); g(f'v_add_u32 v{t[1]}, v{t[1]}, v{t[0]}')
    g('s_mul_i32 s84, s58, 896')
    for jj in range(16):
        g(f'buffer_load_ushort v{xs+jj}, v{t[1]}, s[12:15], s84 offen')
        if jj < 15: g('s_add_u32 s84, s84, 896')
    g(f'v_lshlrev_b32 v{t[2]}, 7, v{c.lh}')
    g('s_lshl_b32 s84, s58, 3'); g(f's_add_u32 s84, s84, {OFF_ST}')
    for k in range(8):
        g(f'buffer_load_dwordx4 {V(st+4*k,4)}, v{t[2]}, s[28:31], s84 offen offset:{16*k} sc1')
    g(f'v_lshlrev_b32 v{t[2]}, 4, v{c.lane}')
    g(f'v_add_u32 v{t[3]}, s44, v{t[2]}')
    last = None
    for qd in range(4):
        rf, cf = qd >> 1, qd & 1
        for ki, k in enumerate('ms'):
            for q in range(4):
                last = g(f'ds_write_b128 v{t[3]}, {V(acc[k][rf][cf]+4*q,4)} offset:{qd*8192 + ki*4096 + q*1024}')
    g.wait_ds(last)
    g('s_barrier')
    g('s_lshl_b32 s84, s3, 13')
    g(f'v_add_u32 v{t[3]}, s84, v{t[2]}')
    M, Sx = acc['m'][0][0], acc['s'][0][0]
    tmp = [acc['m'][0][1], acc['m'][1][0], acc['m'][1][1], acc['s'][0][1], acc['s'][1][0], acc['s'][1][1]]
    for src in range(4):
        dM = M if src == 0 else tmp[src - 1]
        dS = Sx if src == 0 else tmp[2 + src]
        for q in range(4):
            g(f'ds_read_b128 {V(dM+4*q,4)}, v{t[3]} offset:{src*W2_WAVE % 65536 if src*W2_WAVE + 4096 + 3072 < 65536 else 0}' if False else
              f'ds_read_b128 {V(dM+4*q,4)}, v{t[3]} offset:{q*1024}')
            g(f'ds_read_b128 {V(dS+4*q,4)}, v{t[3]} offset:{4096 + q*1024}')
        if src < 3: g(f'v_add_u32 v{t[3]}, {W2_WAVE}, v{t[3]}')
    for src in range(1, 4):
        for j in range(0, 16, 2):
            g(f'v_pk_add_f32 {V(M+j,2)}, {V(M+j,2)}, {V(tmp[src-1]+j,2)}')
            g(f'v_pk_add_f32 {V(Sx+j,2)}, {V(Sx+j,2)}, {V(tmp[2+src]+j,2)}')
    g(f'v_lshlrev_b32 v{dk}, 16, v{dk}'); g(f'v_lshlrev_b32 v{b2}, 16, v{b2}')
    T1, T2 = tmp[0], tmp[1]
    for j in range(16): g(f'v_lshlrev_b32 v{xs+j}, 16, v{xs+j}')
    for j in range(16): g(f'v_add_f32 v{M+j}, v{M+j}, v{b2}')
    for j in range(16): g(f'v_mul_f32 v{T1+j}, {fhex(-LOG2E)}, v{M+j}')
    for j in range(16): g(f'v_exp_f32 v{T1+j}, v{T1+j}')
    for j in range(16): g(f'v_sub_f32 v{T2+j}, v{xs+j}, v{st+2*j}')
    for j in range(16): g(f'v_add_f32 v{T1+j}, 1.0, v{T1+j}')
    for j in range(16): g(f'v_rcp_f32 v{T1+j}, v{T1+j}')
    for j in range(16): g(f'v_mul_f32 v{T2+j}, v{T2+j}, v{st+2*j+1}')
    for j in range(16): g(f'v_fmac_f32 v{Sx+j}, v{T2+j}, v{dk}')
    for j in range(16): g(f'v_mul_f32 v{M+j}, v{M+j}, v{T1+j}')
    for j in range(16): g(f'v_fma_f32 v{M+j}, v{Sx+j}, v{M+j}, v{xs+j}')
    g(f'v_add_u32 v{t[0]}, s59, v{c.li}'); g(f'v_lshlrev_b32 v{t[0]}, 2, v{t[0]}')
    g(f'v_mul_u32_u24 v{t[1]}, {16*1792}, v{c.lh}'); g(f'v_add_u32 v{t[1]}, v{t[1]}, v{t[0]}')
    g('s_mul_i32 s84, s58, 1792')
    for jj in range(16):
        g(f'buffer_store_dword v{M+jj}, v{t[1]}, s[40:43], s84 offen')
        if jj < 15: g('s_add_u32 s84, s84, 1792')
```

```python
import sys
from asmlib import *
from consts import *
import phase1 as p1, phase2 as p2

def build(path, opts=()):
    g = Gen(); c = p1.Ctx()
    c.v = Regs('v', 1, 255); c.s = None
    nt = ' nt' if 'nt' in opts else ''
    c.dbg_carry = 'dbgcarry' in opts
    g.raw(p1.header([f'; @launch grid=(224,1,1) block=(256,1,1) lds={LDS_BYTES}']).rstrip('\n'))
    g.raw('.amdgcn_target "amdgcn-amd-amdhsa--gfx950"\n.text\n.globl %s\n.p2align 8\n.type %s,@function\n%s:' % (NAME, NAME, NAME))
    p1.prologue(g, c)
    g('s_mov_b32 s97, 0')
    p1.small_loads(g, c)
    p1.phase1_setup(g, c)
    p1.phase1_lds_addrs(g, c)
    def early(g, c):
        p1.early(g, c)
    c.early = early
    p1.phase1_main(g, c, nt)
    p1.phase1_epiA(g, c)
    c.utok = {}
    p2.w2_setup(g, c)
    for pos in range(9): p2.unit_dma(g, c, pos)
    p1.phase1_epiB(g, c)
    hooks = {0: lambda: (p2.unit_copy(g, c, 0), p2.unit_copy(g, c, 1)),
             1: lambda: (p1.eg_loads(g, c), p2.unit_copy(g, c, 2), p2.unit_copy(g, c, 3)),
             2: lambda: (p2.unit_copy(g, c, 4), p2.unit_copy(g, c, 5)),
             3: lambda: (p2.unit_copy(g, c, 6), p2.unit_copy(g, c, 7))}
    hm_last = p1.phase1_gelu(g, c, hooks)
    p2.unit_copy(g, c, 8)
    g('s_mov_b32 s82, 0')
    hs_last = p1.phase1_epiD(g, c)
    p1.flag_store(g, c, OFF_FM, hm_last)
    for pos in (9, 10, 11): p2.unit_copy(g, c, pos)
    p1.flag_store(g, c, OFF_FS, hs_last)
    for pos in (12, 13, 14, 15): p2.unit_copy(g, c, pos)
    v = c.v
    for r in (c.a, c.A16, c.A16s, c.A128, c.A256, c.coef, c.P, c.mean, c.Eown): v.free(r, 2)
    for r in c.idf: v.free(r, 4)
    for r in (c.zr2, c.zi_rev, c.pi, c.sg, c.vl16): v.free(r)
    c.pollv = (c.v.alloc(), c.v.alloc())
    g(f'v_min_u32 v{c.pollv[0]}, 27, v{c.lane}'); g(f'v_lshlrev_b32 v{c.pollv[0]}, 2, v{c.pollv[0]}')
    g('s_mov_b32 s52, 0x0fffffff'); g('s_mov_b32 s53, 0')
    def after_hs(g, c):
        t0, t1 = c.v.alloc(), c.v.alloc()
        g('s_cmp_eq_u32 s6, 31'); g('s_cselect_b32 s84, 0, 1'); g('s_or_b32 s84, s84, s7'); g('s_or_b32 s84, s84, s3')
        g(f's_mov_b32 s85, {WS_USED}'); g('s_cmp_eq_u32 s84, 0'); g(f's_cselect_b32 s84, {OFF_X}, s85')
        g('s_add_u32 s85, s97, 1')
        g(f'v_mov_b32 v{t0}, s85')
        g(f'v_cmp_eq_u32 vcc, 0, v{c.lane}')
        g(f'v_mov_b32 v{t1}, {WS_USED}')
        g(f'v_cndmask_b32 v{t1}, v{t1}, 0, vcc')
        g(f'buffer_store_dword v{t0}, v{t1}, s[28:31], s84 offen sc1')
        c.v.free(t0); c.v.free(t1)
    c.after_hs_poll = after_hs
    p2.phase2_main(g, c)
    p2.phase2_final(g, c)
    g.label('L_exit')
    g('s_endpgm')
    txt = g.finalize(verbose=True)
    txt = txt.replace('    s_mul_i32 s96, s96, 0x9E3779B1', '    s_mov_b32 s97, s96\n    s_mul_i32 s96, s96, 0x9E3779B1')
    txt += f'''.section .rodata,"a"
.p2align 6
.amdhsa_kernel {NAME}
  .amdhsa_next_free_vgpr 512
  .amdhsa_next_free_sgpr 102
  .amdhsa_accum_offset 256
  .amdhsa_group_segment_fixed_size 0
  .amdhsa_kernarg_size 136
  .amdhsa_user_sgpr_count 2
  .amdhsa_user_sgpr_kernarg_segment_ptr 1
  .amdhsa_system_sgpr_workgroup_id_x 1
.end_amdhsa_kernel
'''
    open(path, 'w').write(txt)
    print('max arch vgpr', c.v.maxused, 'bytes', len(txt))

if __name__ == '__main__':
    build(sys.argv[1], sys.argv[2:])
```

```python
import re

REG_RE = re.compile(r'(?<![\w.])([vas])(?:\[(\d+):(\d+)\]|(\d+))(?![\w.])')

def regs_of(tok):
    out = set()
    t = tok.strip()
    for m in REG_RE.finditer(t):
        k = m.group(1)
        if m.group(4) is not None:
            out.add((k, int(m.group(4))))
        else:
            for i in range(int(m.group(2)), int(m.group(3)) + 1):
                out.add((k, i))
    if re.search(r'\bvcc(_lo|_hi)?\b', t): out.add(('vcc', 0))
    if re.search(r'\bexec(_lo|_hi)?\b', t): out.add(('exec', 0))
    if re.search(r'\bm0\b', t): out.add(('m0', 0))
    return out

def split_ops(s):
    ops, depth, cur = [], 0, ''
    for ch in s:
        if ch == '[': depth += 1
        if ch == ']': depth -= 1
        if ch == ',' and depth == 0:
            ops.append(cur.strip()); cur = ''
        else:
            cur += ch
    if cur.strip(): ops.append(cur.strip())
    return ops

TRANS = ('v_exp_f32', 'v_log_f32', 'v_rcp_f32', 'v_rsq_f32', 'v_sqrt_f32', 'v_sin_f32', 'v_cos_f32', 'v_rcp_iflag_f32')

class Ins:
    __slots__ = ('text', 'mn', 'ops', 'rd', 'wr', 'kind', 'tag', 'lds_dma', 'passes', 'srcc', 'srcab')
    def __init__(self, text, tag=None):
        self.text = text
        self.tag = tag
        body = text.split(';')[0].strip()
        parts = body.split(None, 1)
        self.mn = parts[0]
        rest = parts[1] if len(parts) > 1 else ''
        self.ops = split_ops(rest)
        self.rd, self.wr = set(), set()
        self.lds_dma = False
        self.passes = 0
        self.srcc = set(); self.srcab = set()
        mn, ops = self.mn, self.ops
        R = regs_of
        first = lambda o: o.split()[0] if o else ''
        if mn.startswith('v_mfma'):
            self.kind = 'mfma'
            self.passes = 8 if '32x32' in mn else 4
            self.wr = R(ops[0]); self.srcab = R(ops[1]) | R(ops[2]); self.srcc = R(first(ops[3]))
            self.rd = self.srcab | self.srcc
        elif mn.startswith('v_'):
            self.kind = 'valu'
            if mn.startswith('v_cmp'):
                self.wr = R(ops[0]); self.rd = set().union(*[R(o) for o in ops[1:]])
                if mn.startswith('v_cmpx'): self.wr |= {('exec', 0)}
            elif mn.startswith('v_permlane') and 'swap' in mn:
                self.wr = R(ops[0]) | R(ops[1]); self.rd = set(self.wr)
            elif mn in ('v_readfirstlane_b32', 'v_readlane_b32'):
                self.wr = R(ops[0]); self.rd = set().union(*[R(o) for o in ops[1:]])
            elif mn in ('v_nop',):
                pass
            else:
                self.wr = R(ops[0])
                srcs = ops[1:]
                if mn.startswith(('v_add_co', 'v_sub_co', 'v_addc_co', 'v_subb_co', 'v_subrev_co', 'v_mad_u64', 'v_div_scale')):
                    self.wr |= R(ops[1]); srcs = ops[2:]
                self.rd = set().union(*[R(o) for o in srcs]) if srcs else set()
                if mn.startswith(('v_fmac', 'v_dot2c', 'v_pk_fmac', 'v_writelane', 'v_mac')): self.rd |= R(ops[0])
                if 'dst_unused:UNUSED_PRESERVE' in text or '_d16' in mn: self.rd |= R(ops[0])
                if mn.startswith('v_cndmask') and len(ops) == 3: self.rd |= {('vcc', 0)}
            self.rd |= {('exec', 0)}
        elif mn.startswith('ds_'):
            self.kind = 'ds'
            if mn.startswith(('ds_read', 'ds_bpermute', 'ds_permute', 'ds_swizzle')) or '_rtn' in mn:
                self.wr = R(first(ops[0])); self.rd = set().union(*[R(first(o)) for o in ops[1:]])
            else:
                self.rd = set().union(*[R(first(o)) for o in ops])
        elif mn.startswith(('buffer_', 'global_')):
            self.kind = 'vmem'
            toks = text.split(';')[0].split()
            self.lds_dma = ('lds' in toks) or ('_lds_' in mn)
            if mn.startswith('buffer_'):
                if mn.startswith(('buffer_wbl2', 'buffer_inv')):
                    pass
                elif self.lds_dma:
                    self.rd = set().union(*[R(first(o)) for o in ops]) | {('m0', 0)}
                elif 'load' in mn:
                    self.wr = R(ops[0]); self.rd = set().union(*[R(first(o)) for o in ops[1:]])
                    if 'd16' in mn: self.rd |= self.wr
                elif 'atomic' in mn:
                    self.rd = set().union(*[R(first(o)) for o in ops])
                    if 'sc0' in toks: self.wr = R(ops[0])
                else:
                    self.rd = set().union(*[R(first(o)) for o in ops])
            else:
                if self.lds_dma:
                    self.rd = set().union(*[R(first(o)) for o in ops]) | {('m0', 0)}
                elif 'load' in mn:
                    self.wr = R(ops[0]); self.rd = set().union(*[R(first(o)) for o in ops[1:]])
                    if 'd16' in mn: self.rd |= self.wr
                else:
                    self.rd = set().union(*[R(first(o)) for o in ops])
        elif mn.startswith('s_'):
            if mn.startswith(('s_load', 's_buffer_load', 's_memtime', 's_memrealtime')):
                self.kind = 'smem'
                self.wr = R(ops[0]); self.rd = set().union(*[R(first(o)) for o in ops[1:]]) if len(ops) > 1 else set()
            elif mn in ('s_waitcnt', 's_nop', 's_barrier', 's_endpgm', 's_sleep', 's_setprio', 's_branch') or mn.startswith('s_cbranch'):
                self.kind = 'ctl'
                if mn == 's_cbranch_vccz' or mn == 's_cbranch_vccnz': self.rd = {('vcc', 0)}
                if mn == 's_cbranch_execz' or mn == 's_cbranch_execnz': self.rd = {('exec', 0)}
            elif mn.startswith(('s_cmp', 's_bitcmp')):
                self.kind = 'salu'; self.rd = set().union(*[R(o) for o in ops])
            else:
                self.kind = 'salu'
                self.wr = R(ops[0]); self.rd = set().union(*[R(o) for o in ops[1:]]) if len(ops) > 1 else set()
                if 'saveexec' in mn: self.wr |= {('exec', 0)}; self.rd |= {('exec', 0)}
                if mn.startswith(('s_addk', 's_mulk', 's_cmov')): self.rd |= R(ops[0])
        else:
            raise ValueError('cannot classify: ' + text)

def is_vec(r): return r[0] in ('v', 'a')

class Gen:
    def __init__(self):
        self.items = []
        self.ntok = 0
        self.bgq = []; self.pace = 20; self.cnt = 0
    def __call__(self, text, tag=None):
        toks = []
        for line in text.split('\n'):
            line = line.strip()
            if not line: continue
            if line.startswith(';'):
                self.items.append(('raw', '    ' + line)); continue
            ins = Ins(line, tag)
            self.items.append(ins)
            toks.append(ins)
        return toks[-1] if toks else None
    def label(self, name): self.items.append(('label', name))
    def raw(self, text): self.items.append(('raw', text))
    def comment(self, text): self.items.append(('raw', '    ; ' + text))
    def wait_vm(self, ins): self.items.append(('waitvm', ins))
    def wait_ds(self, ins): self.items.append(('waitds', ins))
    def drain(self): self.items.append(('drain',))
    def save(self): self.items.append(('save',))
    def restore(self): self.items.append(('restore',))
    def bg(self, fn): self.bgq.append(fn)
    def tick(self, n=1):
        self.cnt += n
        while self.bgq and self.cnt >= self.pace:
            self.cnt -= self.pace
            self.bgq.pop(0)()
        if not self.bgq: self.cnt = 0
    def t(self, text):
        r = self(text); self.tick(); return r
    def bg_flush(self, n=None):
        while self.bgq and (n is None or n > 0):
            self.bgq.pop(0)()
            if n is not None: n -= 1
    def stamp(self, k):
        if getattr(self, 'stamp_v', None) is None: return
        self('s_memrealtime s[%d:%d]' % (self.stamp_s, self.stamp_s + 1))
        self('s_waitcnt lgkmcnt(0)')
        self('v_writelane_b32 v%d, s%d, %d' % (self.stamp_v, self.stamp_s, k))
    def nop(self, n=1):
        while n > 0:
            k = min(n, 16); self('s_nop %d' % (k - 1)); n -= k

    def finalize(self, verbose=False):
        out = []
        pend_vm, pend_ds = [], []
        smem_pend = []
        hist = []
        stats = {'nops': 0, 'waits': 0}
        saved = []
        def emit_text(t): out.append(t)
        def push_hist(ins):
            hist.append(ins)
            if len(hist) > 40: hist.pop(0)
        def ws_of(ins):
            if ins.mn == 's_nop': return int(ins.ops[0], 0) + 1
            return 1
        def emit_ins(ins):
            emit_text('    ' + ins.text); push_hist(ins)
        def do_wait(vm=None, lg=None):
            parts = []
            if vm is not None: parts.append('vmcnt(%d)' % vm)
            if lg is not None: parts.append('lgkmcnt(%d)' % lg)
            w = Ins('s_waitcnt ' + ' '.join(parts)); apply_wait(w); emit_ins(w); stats['waits'] += 1
        def apply_wait(w):
            t = w.text
            m = re.search(r'vmcnt\((\d+)\)', t)
            if m:
                n = int(m.group(1))
                while len(pend_vm) > n: pend_vm.pop(0)
            m = re.search(r'lgkmcnt\((\d+)\)', t)
            if m:
                n = int(m.group(1))
                if n == 0: smem_pend.clear()
                if not smem_pend or n == 0:
                    while len(pend_ds) > n: pend_ds.pop(0)
        def need_wait_for(lst, idx, maxc):
            return min(len(lst) - 1 - idx, maxc)
        def dist_since(pred):
            d = 0
            for h in reversed(hist):
                if pred(h): return d
                d += ws_of(h)
            return None
        def require(pred, n):
            d = dist_since(pred)
            if d is not None and d < n:
                k = n - d
                stats['nops'] += k
                while k > 0:
                    q = min(k, 16); emit_ins(Ins('s_nop %d' % (q - 1))); k -= q
        for it in self.items:
            if isinstance(it, tuple):
                if it[0] == 'label':
                    emit_text(it[1] + ':')
                elif it[0] == 'raw':
                    emit_text(it[1])
                elif it[0] == 'waitvm':
                    if it[1] in pend_vm:
                        do_wait(vm=need_wait_for(pend_vm, pend_vm.index(it[1]), 63))
                elif it[0] == 'waitds':
                    if it[1] in pend_ds:
                        do_wait(lg=0 if smem_pend else need_wait_for(pend_ds, pend_ds.index(it[1]), 15))
                elif it[0] == 'drain':
                    do_wait(vm=0, lg=0)
                elif it[0] == 'save':
                    saved.append((list(pend_vm), list(pend_ds), list(smem_pend), list(hist)))
                elif it[0] == 'restore':
                    a, b, c_, d = saved.pop()
                    pend_vm[:] = a; pend_ds[:] = b; smem_pend[:] = c_; hist[:] = d
                continue
            ins = it
            touch = ins.rd | ins.wr
            if ins.mn == 's_waitcnt':
                apply_wait(ins); emit_ins(ins); continue
            vm_n = lg_n = None
            for i in range(len(pend_vm) - 1, -1, -1):
                p = pend_vm[i]
                if p.wr & touch:
                    vm_n = need_wait_for(pend_vm, i, 63); break
            for i in range(len(pend_ds) - 1, -1, -1):
                p = pend_ds[i]
                if p.wr & touch:
                    lg_n = need_wait_for(pend_ds, i, 15); break
            if any(p.wr & touch for p in smem_pend): lg_n = 0
            if lg_n is not None and smem_pend: lg_n = 0
            if vm_n is not None or lg_n is not None: do_wait(vm=vm_n, lg=lg_n)
            if ins.kind == 'vmem' and len(pend_vm) >= 63: do_wait(vm=62)
            vrd = {r for r in ins.rd if is_vec(r)}
            vwr = {r for r in ins.wr if is_vec(r)}
            srd = {r for r in ins.rd if r[0] in ('s', 'vcc')}
            if ins.kind == 'mfma':
                require(lambda h: h.kind == 'valu' and (h.wr & vrd), 2)
                require(lambda h: h.kind == 'valu' and ('exec', 0) in h.wr, 4)
                require(lambda h: h.kind == 'mfma' and (h.wr & ins.srcab), 12)
                require(lambda h: h.kind == 'mfma' and (h.wr & ins.srcc) and (h.wr != ins.srcc or h.passes != ins.passes), 10)
                require(lambda h: h.kind == 'mfma' and (h.wr & ins.wr) and not (h.wr == ins.srcc and h.passes == ins.passes), 10)
            if ins.kind in ('valu', 'vmem', 'ds'):
                require(lambda h: h.kind == 'mfma' and h.passes == 8 and (h.wr & (vrd | vwr)), 12)
                require(lambda h: h.kind == 'mfma' and h.passes == 4 and (h.wr & (vrd | vwr)), 8)
            if ins.kind == 'valu' or (ins.kind in ('ds', 'vmem') and vwr):
                require(lambda h: h.kind == 'mfma' and h.passes == 8 and (h.srcc & vwr), 7)
                require(lambda h: h.kind == 'mfma' and h.passes == 4 and (h.srcc & vwr), 3)
            if ins.kind == 'valu':
                if ins.mn not in TRANS:
                    require(lambda h: h.mn in TRANS and (h.wr & vrd), 1)
                else:
                    require(lambda h: h.mn in TRANS and (h.wr & vrd), 1)
                if not ins.mn.startswith('v_dot2'):
                    require(lambda h: h.mn.startswith('v_dot2') and (h.wr & (vrd | vwr)), 3)
                if ins.mn.startswith('v_permlane') or 'dpp' in ins.text or 'row_' in ins.text or 'quad_perm' in ins.text:
                    require(lambda h: h.kind == 'valu' and (h.wr & vrd), 2)
                    require(lambda h: h.kind == 'valu' and ('exec', 0) in h.wr, 5)
                if ins.mn in ('v_readfirstlane_b32', 'v_readlane_b32'):
                    require(lambda h: h.kind == 'valu' and (h.wr & vrd), 1)
                    require(lambda h: h.kind == 'valu' and ('exec', 0) in h.wr, 4)
                if srd:
                    require(lambda h: h.kind == 'valu' and (h.wr & srd), 2)
                if ins.mn in ('v_readlane_b32', 'v_writelane_b32'):
                    require(lambda h: h.kind == 'valu' and (h.wr & srd), 4)
                if 'sdwa' in ins.text or 'op_sel' in ins.text or '_sel:' in ins.text:
                    pass
                require(lambda h: h.kind == 'valu' and ('dst_sel' in h.text) and (h.wr & (vrd | vwr)), 1)
                require(lambda h: h.kind == 'vmem' and 'store' in h.mn and ('x4' in h.mn or 'x3' in h.mn) and (regs_of(h.ops[0] if h.mn.startswith('buffer') else h.ops[1]) & vwr), 2)
            if ins.kind in ('ds', 'vmem') and vwr:
                require(lambda h: h.kind == 'vmem' and 'store' in h.mn and ('x4' in h.mn or 'x3' in h.mn) and (regs_of(h.ops[0] if h.mn.startswith('buffer') else h.ops[1]) & vwr), 1)
            if ins.kind == 'vmem':
                sr = {r for r in ins.rd if r[0] == 's'}
                require(lambda h: h.kind == 'valu' and (h.wr & sr), 5)
                if ins.lds_dma:
                    require(lambda h: h.kind == 'salu' and ('m0', 0) in h.wr, 1)
            if ins.kind == 'salu' or ins.kind == 'smem':
                sr = {r for r in ins.rd if r[0] in ('s', 'vcc')}
                require(lambda h: h.kind == 'valu' and (h.wr & sr), 2)
            if ins.mn in ('s_cbranch_vccz', 's_cbranch_vccnz'):
                require(lambda h: h.kind == 'valu' and ('vcc', 0) in h.wr, 5)
            if ins.mn in ('s_cbranch_execz', 's_cbranch_execnz'):
                require(lambda h: h.kind == 'valu' and ('exec', 0) in h.wr, 5)
            emit_ins(ins)
            if ins.kind == 'vmem': pend_vm.append(ins)
            elif ins.kind == 'ds': pend_ds.append(ins)
            elif ins.kind == 'smem': smem_pend.append(ins)
            if ins.kind == 'ds' and len(pend_ds) > 15 and False:
                pass
        if verbose: print('finalize:', stats, 'lines', len(out))
        return '\n'.join(out) + '\n'

class Regs:
    def __init__(self, kind, lo, hi):
        self.kind, self.lo, self.hi = kind, lo, hi
        self.used = [False] * (hi + 1)
        self.maxused = lo - 1
    def alloc(self, n=1, align=1):
        if n >= 2: align = max(align, 2)
        b = self.lo
        while True:
            b = (b + align - 1) // align * align
            if b + n - 1 > self.hi: raise RuntimeError('out of %s registers (need %d)' % (self.kind, n))
            if not any(self.used[b:b + n]):
                for i in range(b, b + n): self.used[i] = True
                self.maxused = max(self.maxused, b + n - 1)
                return b
            b += 1
    def free(self, b, n=1):
        for i in range(b, b + n):
            assert self.used[i], (self.kind, i)
            self.used[i] = False

def rng(kind, b, n):
    return '%s%d' % (kind, b) if n == 1 else '%s[%d:%d]' % (kind, b, b + n - 1)
def V(b, n=1): return rng('v', b, n)
def A(b, n=1): return rng('a', b, n)
def S(b, n=1): return rng('s', b, n)
```

```python
import struct
def f2u(f): return struct.unpack('<I', struct.pack('<f', f))[0]
def fhex(f): return '0x%08x' % f2u(f)
NAME = 'recurrent_scan__ssm_conv_s5__mixer_channel_mlp__prompt_kernel'
OFF_HM = 0
OFF_HS = OFF_HM + 64 * 112 * 1024
OFF_ST = OFF_HS + 64 * 56 * 1024
OFF_EG = OFF_ST + 2048 * 8
OFF_FM = OFF_EG + 14 * 16 * 512
OFF_FS = OFF_FM + 32 * 128
OFF_X  = OFF_FS + 32 * 128
OFF_DBG = OFF_X + 256
WS_USED = 32 << 20
L_XR = 0
L_BR = 49152
L_WR = 73728
L_SM = 154624
L_CSP = 0
L_CSF = 3072
L_B1 = 5120
L_STAT = 5632
L_SEG = 6656
LDS_BYTES = 163840
LOG2E = 1.4426950408889634
```

```python
from asmlib import *
from consts import *

def header(launch_lines):
    ref = open('recurrent_scan__ssm_conv_s5__mixer_channel_mlp__prompt.s.ref').read()
    lines = []
    for l in ref.split('\n'):
        if l.startswith('; Override') or l.startswith('; grid=') or '@launch' in l: continue
        if not l.startswith(';'): break
        lines.append(l)
    return '\n'.join(lines) + '\n' + '\n'.join(launch_lines) + '\n'

class Ctx:
    pass

def prologue(g, c, nwg_exit=224):
    s = c.s
    g('s_cmp_ge_u32 s2, %d' % nwg_exit)
    g('s_cbranch_scc1 L_exit')
    g('s_load_dwordx16 s[44:59], s[0:1], 0')
    g('s_load_dwordx16 s[60:75], s[0:1], 64')
    g('s_load_dwordx2 s[76:77], s[0:1], 128')
    v = c.v
    c.lane = v.alloc(); c.li = v.alloc(); c.lh = v.alloc()
    g(f'v_lshrrev_b32 v{c.li}, 6, v0')
    g(f'v_and_b32 v{c.lane}, 63, v0')
    g(f'v_readfirstlane_b32 s3, v{c.li}')
    g(f'v_and_b32 v{c.li}, 31, v{c.lane}')
    g(f'v_lshrrev_b32 v{c.lh}, 5, v{c.lane}')
    g('s_and_b32 s80, s2, 7')
    g('s_lshr_b32 s81, s2, 3')
    g('s_mul_i32 s82, s81, 37')
    g('s_lshr_b32 s82, s82, 8')
    g('s_mul_i32 s83, s82, 7')
    g('s_sub_u32 s83, s81, s83')
    g('s_lshr_b32 s84, s80, 1')
    g('s_lshl_b32 s84, s84, 2')
    g('s_add_u32 s4, s84, s82')
    g('s_and_b32 s84, s80, 1')
    g('s_mul_i32 s84, s84, 7')
    g('s_add_u32 s5, s84, s83')
    g('s_lshl_b32 s84, s80, 2')
    g('s_add_u32 s6, s84, s82')
    g('s_mov_b32 s7, s83')
    g('s_lshl_b32 s84, s82, 1')
    g('s_add_u32 s8, s83, s84')
    g('s_cmp_ge_u32 s8, 7')
    g('s_cselect_b32 s84, 7, 0')
    g('s_sub_u32 s8, s8, s84')
    g('s_cmp_ge_u32 s8, 7')
    g('s_cselect_b32 s84, 7, 0')
    g('s_sub_u32 s8, s8, s84')
    g('s_mov_b32 s9, s82')
    g('s_waitcnt lgkmcnt(0)')
    def srd(dst, ptr, nbytes):
        g(f's_mov_b32 s{dst}, s{ptr}')
        g(f's_and_b32 s{dst+1}, s{ptr+1}, 0xffff')
        g(f's_mov_b32 s{dst+2}, {nbytes}')
        g(f's_mov_b32 s{dst+3}, 0x20000')
    srd(12, 44, 2048 * 896)
    srd(16, 50, 448 * 896)
    g('s_sub_u32 s20, s52, 1024'); g('s_subb_u32 s21, s53, 0'); g('s_and_b32 s21, s21, 0xffff')
    g(f's_mov_b32 s22, {448 * 896 + 1024}'); g('s_mov_b32 s23, 0x20000')
    srd(24, 64, 448 * 3584)
    srd(28, 76, WS_USED)
    srd(36, 68, 1792 * 896)
    srd(40, 72, 2048 * 448 * 4)
    g('s_cmp_ge_u32 s3, 2')
    g('s_cselect_b32 s32, s56, s54')
    g('s_cselect_b32 s33, s57, s55')
    g('s_and_b32 s33, s33, 0xffff')
    g(f's_mov_b32 s34, {448 * 896}')
    g('s_mov_b32 s35, 0x20000')

def pi_of(g, dst, i, t0, t1):
    g(f'v_bfe_u32 v{t0}, v{i}, 2, 1')
    g(f'v_lshlrev_b32 v{t0}, 4, v{t0}')
    g(f'v_lshrrev_b32 v{t1}, 3, v{i}')
    g(f'v_lshl_add_u32 v{t0}, v{t1}, 2, v{t0}')
    g(f'v_and_b32 v{t1}, 3, v{i}')
    g(f'v_add_u32 v{dst}, v{t0}, v{t1}')

def sigma_of(g, dst, i, t0, t1):
    g(f'v_and_b32 v{t0}, 0x13, v{i}')
    g(f'v_bfe_u32 v{t1}, v{i}, 2, 1')
    g(f'v_lshl_add_u32 v{t0}, v{t1}, 3, v{t0}')
    g(f'v_bfe_u32 v{t1}, v{i}, 3, 1')
    g(f'v_lshl_add_u32 v{dst}, v{t1}, 2, v{t0}')

def phase1_setup(g, c):
    v = c.v
    t = [v.alloc() for _ in range(6)]
    L, I, H = c.lane, c.li, c.lh
    c.vox = [v.alloc() for _ in range(4)]
    c.vob = v.alloc()
    c.vow = [v.alloc() for _ in range(4)]
    g(f'v_lshrrev_b32 v{t[0]}, 3, v{L}')
    g(f'v_lshrrev_b32 v{t[1]}, 4, v{L}')
    g(f'v_and_b32 v{t[2]}, 7, v{L}')
    g('s_lshl_b32 s84, s3, 5')
    g('s_mov_b32 s85, 896')
    for m in range(4):
        g(f'v_add_u32 v{t[3]}, {8*m}, v{t[0]}')
        g(f'v_add_u32 v{t[3]}, s84, v{t[3]}')
        g(f'v_mul_lo_u32 v{t[3]}, v{t[3]}, s85')
        g(f'v_add_u32 v{t[4]}, {4*(m&1)}, v{t[1]}')
        g(f'v_xor_b32 v{t[4]}, v{t[2]}, v{t[4]}')
        g(f'v_lshl_add_u32 v{c.vox[m]}, v{t[4]}, 4, v{t[3]}')
        if m: g(f'v_subrev_u32 v{c.vox[m]}, {1024*m}, v{c.vox[m]}')
    g('s_lshl_b32 s84, s3, 3')
    g(f'v_add_u32 v{t[3]}, s84, v{t[0]}')
    g(f'v_mul_lo_u32 v{t[3]}, v{t[3]}, s85')
    g('s_and_b32 s84, s3, 1')
    g('s_lshl_b32 s84, s84, 2')
    g(f'v_add_u32 v{t[4]}, s84, v{t[1]}')
    g(f'v_xor_b32 v{t[4]}, v{t[2]}, v{t[4]}')
    g(f'v_lshl_add_u32 v{c.vob}, v{t[4]}, 4, v{t[3]}')
    g('s_mov_b32 s85, 3584')
    g(f'v_and_b32 v{t[3]}, 15, v{L}')
    g(f'v_lshlrev_b32 v{t[4]}, 2, v{t[1]}')
    g(f'v_xor_b32 v{t[3]}, v{t[3]}, v{t[4]}')
    g(f'v_lshlrev_b32 v{t[3]}, 4, v{t[3]}')
    for m in range(4):
        g(f'v_add_u32 v{t[4]}, {4*m}, v{t[1]}')
        g(f'v_mul_lo_u32 v{t[4]}, v{t[4]}, s85')
        g(f'v_add_u32 v{c.vow[m]}, v{t[4]}, v{t[3]}')
        if m: g(f'v_subrev_u32 v{c.vow[m]}, {1024*m}, v{c.vow[m]}')
    g(f's_mul_i32 s86, s4, {128*896}')
    g(f's_mul_i32 s87, s5, {32*896}')
    g(f's_mul_i32 s88, s3, {16*3584}')
    g('s_lshl_b32 s84, s5, 8')
    g('s_add_u32 s88, s88, s84')
    g('s_lshl_b32 s89, s3, 12')
    g('s_lshl_b32 s90, s3, 11')
    g('s_mov_b32 s91, s8')
    for k in t: v.free(k)

def dma_chunk_setup(g):
    g('s_lshl_b32 s78, s91, 7')
    g('s_add_u32 s92, s86, s78')
    g('s_add_u32 s93, s87, s78')
    g(f's_mul_i32 s78, s91, {64*3584}')
    g('s_add_u32 s94, s88, s78')
    g('s_add_u32 s91, s91, 1')
    g('s_cmp_eq_u32 s91, 7')
    g('s_cselect_b32 s91, 0, s91')

def dma_list(c, slot, nt=''):
    out = []
    for m in range(4):
        ld = f'buffer_load_dwordx4 v{c.vox[m]}, s[12:15], s92 offen offset:{1024*m} lds{nt}'
        out.append((f's_add_u32 m0, s89, {L_XR + slot*16384}', ld) if m == 0 else (ld,))
    out.append((f's_add_u32 m0, s90, {L_BR + slot*8192}', f'buffer_load_dwordx4 v{c.vob}, s[16:19], s93 offen lds{nt}'))
    out.append((f'buffer_load_dwordx4 v{c.vob}, s[20:23], s93 offen offset:1024 lds{nt}',))
    for m in range(4):
        ld = f'buffer_load_dwordx4 v{c.vow[m]}, s[24:27], s94 offen offset:{1024*m} lds{nt}'
        out.append((f's_add_u32 m0, s89, {L_WR + slot*16384}', ld) if m == 0 else (ld,))
    return out

def phase1_lds_addrs(g, c):
    v = c.v
    t = [v.alloc() for _ in range(8)]
    L, I, H = c.lane, c.li, c.lh
    c.pi = v.alloc(); c.sg = v.alloc()
    pi_of(g, c.pi, I, t[0], t[1])
    sigma_of(g, c.sg, I, t[0], t[1])
    c.ax = [v.alloc() for _ in range(4)]
    c.ab = [v.alloc() for _ in range(4)]
    c.aw = [[v.alloc() for _ in range(4)] for _ in range(4)]
    g('s_lshl_b32 s84, s3, 5')
    g(f'v_add_u32 v{t[0]}, s84, v{c.pi}')
    g(f'v_lshlrev_b32 v{t[0]}, 7, v{t[0]}')
    g(f'v_bfe_u32 v{t[1]}, v{c.pi}, 1, 3')
    g(f'v_xor_b32 v{t[1]}, v{t[1]}, v{H}')
    g(f'v_lshrrev_b32 v{t[2]}, 3, v{c.sg}')
    g(f'v_lshlrev_b32 v{t[2]}, 11, v{t[2]}')
    g(f'v_and_b32 v{t[3]}, 7, v{c.sg}')
    g(f'v_lshl_add_u32 v{t[2]}, v{t[3]}, 7, v{t[2]}')
    g(f'v_bfe_u32 v{t[3]}, v{c.sg}, 1, 3')
    g(f'v_xor_b32 v{t[3]}, v{t[3]}, v{H}')
    g(f'v_bfe_u32 v{t[4]}, v{L}, 2, 2')
    g(f'v_lshlrev_b32 v{t[5]}, 3, v{H}')
    g(f'v_add_u32 v{t[5]}, v{t[5]}, v{t[4]}')
    g(f'v_lshlrev_b32 v{t[5]}, 8, v{t[5]}')
    g(f'v_bfe_u32 v{t[6]}, v{L}, 4, 1')
    g(f'v_lshlrev_b32 v{t[6]}, 1, v{t[6]}')
    g(f'v_and_b32 v{t[7]}, 1, v{L}')
    g(f'v_add_u32 v{t[6]}, v{t[6]}, v{t[7]}')
    g(f'v_lshlrev_b32 v{t[6]}, 4, v{t[6]}')
    g(f'v_add_u32 v{t[5]}, v{t[5]}, v{t[6]}')
    g(f'v_bfe_u32 v{t[7]}, v{L}, 1, 1')
    g(f'v_lshl_add_u32 v{t[5]}, v{t[7]}, 3, v{t[5]}')
    for s in range(4):
        g(f's_add_u32 s84, s3, {s}')
        g('s_and_b32 s84, s84, 3')
        g('s_lshl_b32 s85, s84, 1')
        g(f'v_xor_b32 v{t[6]}, s85, v{t[1]}')
        g(f'v_lshl_add_u32 v{c.ax[s]}, v{t[6]}, 4, v{t[0]}')
        if L_XR: g(f'v_add_u32 v{c.ax[s]}, {L_XR}, v{c.ax[s]}')
        g(f'v_xor_b32 v{t[6]}, s85, v{t[3]}')
        g(f'v_lshl_add_u32 v{t[6]}, v{t[6]}, 4, v{t[2]}')
        g(f'v_add_u32 v{c.ab[s]}, {L_BR}, v{t[6]}')
        g('s_lshl_b32 s85, s84, 12')
        g(f's_add_u32 s85, s85, {L_WR}')
        for f in range(4):
            g(f'v_xor_b32 v{t[6]}, {f}, v{t[4]}')
            g(f'v_lshl_add_u32 v{t[6]}, v{t[6]}, 6, v{t[5]}')
            g(f'v_add_u32 v{c.aw[f][s]}, s85, v{t[6]}')
    for k in t: v.free(k)

def interleave(g, mfmas, fillers, tail=()):
    n = len(mfmas)
    per = [[] for _ in range(n)]
    for k, f in enumerate(fillers):
        per[min(n - 1, k * n // max(1, len(fillers)))].append(f)
    toks = []
    for m, mf in enumerate(mfmas):
        g(mf)
        for f in per[m]:
            if isinstance(f, tuple):
                for x in f: toks.append(g(x))
            elif callable(f):
                f()
            else:
                toks.append(g(f))
    for f in tail: g(f)
    return toks

def merge(*lists):
    tot = sum(len(l) for l in lists)
    out = []; pos = [0] * len(lists)
    for k in range(tot):
        best, bi = None, None
        for i, l in enumerate(lists):
            if pos[i] < len(l):
                frac = (pos[i] + 0.5) / len(l)
                if best is None or frac < best: best, bi = frac, i
        out.append(lists[bi][pos[bi]]); pos[bi] += 1
    return out

def frag_reads(c, n):
    i, s = divmod(n, 4); slot = i % 3; st = c.fr[n & 1]
    r = [f'ds_read_b128 {V(st["x"],4)}, v{c.ax[s]} offset:{slot*16384}',
         f'ds_read_b128 {V(st["br"],4)}, v{c.ab[s]} offset:{slot*8192}',
         f'ds_read_b128 {V(st["bi"],4)}, v{c.ab[s]} offset:{slot*8192+1024}']
    for f in range(4):
        for jj in range(2):
            r.append(f'ds_read_b64_tr_b16 {V(st["w"][f]+2*jj,2)}, v{c.aw[f][s]} offset:{slot*16384+jj*1024}')
    return r

def stats_ops(c, xreg):
    o = []
    for r in range(4):
        lo, hi = c.st_t[2*(r&1)], c.st_t[2*(r&1)+1]
        o += [f'v_lshlrev_b32 v{lo}, 16, v{xreg+r}', f'v_and_b32 v{hi}, 0xffff0000, v{xreg+r}',
              f'v_add_f32 v{c.s1[0]}, v{c.s1[0]}, v{lo}', f'v_add_f32 v{c.s1[1]}, v{c.s1[1]}, v{hi}',
              f'v_fmac_f32 v{c.s2[0]}, v{lo}, v{lo}', f'v_fmac_f32 v{c.s2[1]}, v{hi}, v{hi}']
    return o

def phase1_main(g, c, nt=''):
    v = c.v
    c.accR = v.alloc(16, 4); c.accI = v.alloc(16, 4); c.accM = [v.alloc(16, 4) for _ in range(4)]
    c.fr = [dict(x=v.alloc(4, 4), br=v.alloc(4, 4), bi=v.alloc(4, 4), w=[v.alloc(4, 4) for _ in range(4)]) for _ in range(2)]
    c.s1 = [v.alloc(), v.alloc()]; c.s2 = [v.alloc(), v.alloc()]; c.st_t = [v.alloc() for _ in range(4)]
    c.cs = [v.alloc() for _ in range(6)]
    dma_tok = {}
    def emit_dma(tup, tgt):
        for k, x in enumerate(tup):
            if k and tup[k-1].startswith('s_add_u32 m0'): g('s_nop 0')
            r = g(x)
        dma_tok[tgt] = r
    dma_chunk_setup(g)
    for tup in dma_list(c, 0, nt): emit_dma(tup, 0)
    g.stamp(1)
    g.bg(lambda: dma_chunk_setup(g))
    for tup in dma_list(c, 1, nt): g.bg(lambda tup=tup: emit_dma(tup, 1))
    g.pace = 14; g.cnt = 0
    for r in c.s1 + c.s2 + c.cs: g(f'v_mov_b32 v{r}, 0')
    g('s_mov_b32 s95, 0x3f803f80')
    c.early(g, c)
    g.bg_flush()
    g.wait_vm(dma_tok[0])
    g('s_barrier')
    g.stamp(2)
    for r in frag_reads(c, 0): g(r)
    for n in range(28):
        i, s = divmod(n, 4); st = c.fr[n & 1]
        first = (n == 0)
        C = (lambda reg: '0' if first else V(reg, 16))
        mf = [f'v_mfma_f32_32x32x16_bf16 {V(c.accR,16)}, {V(st["x"],4)}, {V(st["br"],4)}, {C(c.accR)}',
              f'v_mfma_f32_32x32x16_bf16 {V(c.accI,16)}, {V(st["x"],4)}, {V(st["bi"],4)}, {C(c.accI)}']
        for f in range(4):
            mf.append(f'v_mfma_f32_32x32x16_bf16 {V(c.accM[f],16)}, {V(st["w"][f],4)}, {V(st["x"],4)}, {C(c.accM[f])}')
        g('s_waitcnt lgkmcnt(0)')
        if s == 3 and i < 6:
            if (i + 1) in dma_tok: g.wait_vm(dma_tok[i + 1])
            if 'nobar' not in c.opts: g('s_barrier')
        reads = frag_reads(c, n + 1) if n < 27 else []
        if 'noreads' in c.opts: reads = []
        dmas = []
        tgt, part = None, None
        if s == 3 and i + 3 <= 6: tgt, part = i + 3, 0
        elif s < 3 and i + 2 <= 6: tgt, part = i + 2, s + 1
        if tgt == 2 and s < 3: cuts = [0, 0, 4, 7, 10]
        else: cuts = [0, 3, 6, 8, 10]
        if tgt is not None and 'nodma' not in c.opts:
            dl = dma_list(c, tgt % 3, nt)
            seg = dl[cuts[part]:cuts[part + 1]]
            if cuts[part] == 0 and seg: dmas.append(('setup',))
            dmas += seg
        st_ops = stats_ops(c, st['x']) if 'nostats' not in c.opts else []
        per = [[] for _ in range(6)]
        for k, x in enumerate(reads): per[k * 4 // 11].append(x)
        pend_m0 = None
        for k, d in enumerate(dmas): per[2 + k * 4 // len(dmas)].append(d)
        nv = len(st_ops)
        load = [sum((6 if x == ('setup',) else len(x)) if isinstance(x, tuple) else 1 for x in p) for p in per]
        tot = sum(load) + nv
        k = 0
        for m in range(6):
            want = round(tot * (m + 1) / 6) - sum(load[:m + 1]) - k
            want = max(0, min(want, nv - k)) if m < 5 else nv - k
            vs = st_ops[k:k + want]; k += want
            g(mf[m])
            ds = [x for x in per[m] if isinstance(x, str)]
            dm = [x for x in per[m] if isinstance(x, tuple)]
            for x in ds: g(x)
            late = []
            for d in dm:
                if d == ('setup',): dma_chunk_setup(g)
                elif len(d) == 2:
                    late.append(d)
                else: late.append(d)
            vi = 0
            for d in late:
                if len(d) == 2:
                    g(d[0])
                    if vi < len(vs): g(vs[vi]); vi += 1
                    else: g('s_nop 0')
                    dma_tok[tgt] = g(d[1])
                else:
                    if vi < len(vs): g(vs[vi]); vi += 1
                    dma_tok[tgt] = g(d[0])
            for x in vs[vi:]: g(x)
        if s == 0 and 'nodot' not in c.opts:
            srcs = [st['br'], st['bi']] + st['w']
            for r in range(4):
                for k in range(6): g(f'v_dot2c_f32_bf16 v{c.cs[k]}, s95, v{srcs[k]+r}')
    g.stamp(3)
    for st in c.fr:
        v.free(st['x'], 4); v.free(st['br'], 4); v.free(st['bi'], 4)
        for w in st['w']: v.free(w, 4)
    for r in c.st_t: v.free(r)
    for r in c.vox + [c.vob] + c.vow + c.ax + c.ab + sum(c.aw, []): v.free(r)

def cexp(g, c, dre, dim, kreg_or_const, t0, t1, t2):
    if isinstance(kreg_or_const, float):
        k = float(kreg_or_const)
        if k == 1.0:
            g.t(f'v_exp_f32 v{t0}, v{c.zr2}'); g.t(f'v_fract_f32 v{t1}, v{c.zi_rev}')
        else:
            g.t(f'v_mul_f32 v{t0}, {fhex(k)}, v{c.zr2}'); g.t(f'v_mul_f32 v{t1}, {fhex(k)}, v{c.zi_rev}')
            g.t(f'v_exp_f32 v{t0}, v{t0}'); g.t(f'v_fract_f32 v{t1}, v{t1}')
    else:
        g.t(f'v_mul_f32 v{t0}, v{kreg_or_const}, v{c.zr2}'); g.t(f'v_mul_f32 v{t1}, v{kreg_or_const}, v{c.zi_rev}')
        g.t(f'v_exp_f32 v{t0}, v{t0}'); g.t(f'v_fract_f32 v{t1}, v{t1}')
    g.t(f'v_cos_f32 v{t2}, v{t1}')
    g.t(f'v_sin_f32 v{t1}, v{t1}')
    g.t(f'v_mul_f32 v{dre}, v{t0}, v{t2}')
    g.t(f'v_mul_f32 v{dim}, v{t0}, v{t1}')

def small_loads(g, c):
    v = c.v
    c.r_lre = v.alloc(); c.r_lim = v.alloc(); c.r_ldt = v.alloc(); c.r_b1 = v.alloc()
    t0, t1, t2 = v.alloc(), v.alloc(), v.alloc()
    sigma_of(g, t2, c.li, t0, t1)
    g('s_lshl_b32 s84, s5, 5')
    g(f'v_add_u32 v{t2}, s84, v{t2}')
    g(f'v_lshlrev_b32 v{t2}, 1, v{t2}')
    g(f'global_load_ushort v{c.r_lre}, v{t2}, s[46:47]')
    g(f'global_load_ushort v{c.r_lim}, v{t2}, s[48:49]')
    g(f'global_load_ushort v{c.r_ldt}, v{t2}, s[58:59]')
    g(f'v_and_b32 v{t0}, 127, v0')
    g('s_lshl_b32 s84, s5, 7')
    g(f'v_add_u32 v{t0}, s84, v{t0}')
    g(f'v_lshlrev_b32 v{t0}, 1, v{t0}')
    g(f'global_load_ushort v{c.r_b1}, v{t0}, s[66:67]')
    g(f's_mov_b32 s84, {OFF_X}')
    g('s_load_dword s96, s[76:77], s84')
    for r in (t0, t1, t2): v.free(r)

def early(g, c):
    v = c.v
    t = [v.alloc() for _ in range(6)]
    g(f's_mov_b32 s85, {L_SM}')
    g.t(f'v_and_b32 v{t[1]}, 127, v0')
    g.t(f'v_lshl_add_u32 v{t[1]}, v{t[1]}, 2, s85')
    g.t(f'v_lshlrev_b32 v{c.r_b1}, 16, v{c.r_b1}')
    g(f'ds_write_b32 v{t[1]}, v{c.r_b1} offset:{L_B1}')
    g.t(f'v_lshlrev_b32 v{c.r_lre}, 16, v{c.r_lre}')
    g.t(f'v_lshlrev_b32 v{c.r_lim}, 16, v{c.r_lim}')
    g.t(f'v_lshlrev_b32 v{c.r_ldt}, 16, v{c.r_ldt}')
    g.t(f'v_mul_f32 v{t[0]}, {fhex(LOG2E)}, v{c.r_ldt}')
    g.t(f'v_exp_f32 v{t[0]}, v{t[0]}')
    g('s_nop 0')
    g.t(f'v_cvt_pk_bf16_f32 v{t[0]}, v{t[0]}, v{t[0]}')
    g.t(f'v_lshlrev_b32 v{t[0]}, 16, v{t[0]}')
    c.zr2 = v.alloc(); c.zi_rev = v.alloc()
    g.t(f'v_mul_f32 v{c.zr2}, v{t[0]}, v{c.r_lre}')
    g.t(f'v_mul_f32 v{c.zr2}, {fhex(LOG2E)}, v{c.zr2}')
    g.t(f'v_mul_f32 v{c.zi_rev}, v{t[0]}, v{c.r_lim}')
    g.t(f'v_mul_f32 v{c.zi_rev}, {fhex(-0.15915494309189535)}, v{c.zi_rev}')
    c.a = v.alloc(2); c.A16 = v.alloc(2); c.A16s = v.alloc(2); c.A128 = v.alloc(2); c.A256 = v.alloc(2); c.coef = v.alloc(2)
    cexp(g, c, c.a, c.a + 1, 1.0, t[0], t[1], t[2])
    cexp(g, c, c.A16, c.A16 + 1, 16.0, t[0], t[1], t[2])
    cexp(g, c, c.A128, c.A128 + 1, 128.0, t[0], t[1], t[2])
    cexp(g, c, c.A256, c.A256 + 1, 256.0, t[0], t[1], t[2])
    g('s_lshl_b32 s84, s3, 1')
    g.t(f'v_add_u32 v{t[3]}, s84, v{c.lh}')
    g.t(f'v_lshlrev_b32 v{t[3]}, 4, v{t[3]}')
    g.t(f'v_cvt_f32_u32 v{t[3]}, v{t[3]}')
    cexp(g, c, c.A16s, c.A16s + 1, t[3], t[0], t[1], t[2])
    g.t(f'v_add_f32 v{t[0]}, -1.0, v{c.a}')
    g.t(f'v_mul_f32 v{t[1]}, v{c.r_lre}, v{c.r_lre}')
    g.t(f'v_fmac_f32 v{t[1]}, v{c.r_lim}, v{c.r_lim}')
    g.t(f'v_rcp_f32 v{t[1]}, v{t[1]}')
    g.t(f'v_mul_f32 v{t[2]}, v{t[0]}, v{c.r_lre}')
    g.t(f'v_add_f32 v{t[1]}, v{t[1]}, v{t[1]}')
    g.t(f'v_fma_f32 v{t[2]}, -v{c.a+1}, v{c.r_lim}, v{t[2]}')
    g.t(f'v_mul_f32 v{t[3]}, v{t[0]}, v{c.r_lim}')
    g.t(f'v_fmac_f32 v{t[3]}, v{c.a+1}, v{c.r_lre}')
    g.t(f'v_mul_f32 v{c.coef}, v{t[2]}, v{t[1]}')
    g.t(f'v_mul_f32 v{c.coef+1}, v{t[3]}, v{t[1]}')
    c.idf = [v.alloc(4, 4), v.alloc(4, 4)]
    g.t(f'v_lshrrev_b32 v{t[0]}, 3, v{c.li}')
    g.t(f'v_lshlrev_b32 v{t[0]}, 2, v{t[0]}')
    g.t(f'v_and_b32 v{t[1]}, 3, v{c.li}')
    g.t(f'v_add_u32 v{t[0]}, v{t[0]}, v{t[1]}')
    g.t(f'v_bfe_u32 v{t[1]}, v{c.li}, 2, 1')
    g(f'v_cmp_eq_u32 vcc, v{t[1]}, v{c.lh}')
    g.t(f'v_and_b32 v{t[1]}, 1, v{t[0]}')
    g.t(f'v_lshlrev_b32 v{t[1]}, 4, v{t[1]}')
    g.t(f'v_mov_b32 v{t[2]}, 0x3f80')
    g.t(f'v_lshlrev_b32 v{t[2]}, v{t[1]}, v{t[2]}')
    g(f'v_cndmask_b32 v{t[2]}, 0, v{t[2]}, vcc')
    g.t(f'v_lshrrev_b32 v{t[0]}, 1, v{t[0]}')
    for ks in range(2):
        for r in range(4):
            g(f'v_cmp_eq_u32 vcc, {ks*4+r}, v{t[0]}')
            g(f'v_cndmask_b32 v{c.idf[ks]+r}, 0, v{t[2]}, vcc')
    g('s_mov_b32 s98, s60'); g('s_mov_b32 s99, s61')
    g('s_mov_b32 s100, s70'); g('s_mov_b32 s101, s71')
    g.t(f'v_sub_u32 v{t[0]}, s4, v{c.lh}')
    for jj in range(8):
        g(f'v_cmp_lt_i32 s[{60+2*jj}:{61+2*jj}], {2*jj}, v{t[0]}')
    g('s_waitcnt lgkmcnt(0)')
    g('s_mul_i32 s96, s96, 0x9E3779B1')
    g('s_add_u32 s96, s96, 0x7F4A7C15')
    for k in t: v.free(k)
    for k in (c.r_lre, c.r_lim, c.r_ldt, c.r_b1): v.free(k)

def phase1_epiA(g, c):
    v = c.v
    t = [v.alloc() for _ in range(8)]
    cp = [v.alloc() for _ in range(6)]
    for k in range(6): g(f'v_mov_b32 v{cp[k]}, v{c.cs[k]}')
    g('s_lshl_b32 s84, s3, 2'); g(f's_add_u32 s85, s84, {L_SM}')
    g(f'v_lshl_add_u32 v{t[0]}, v{c.li}, 4, s85')
    g(f'v_lshl_add_u32 v{t[1]}, v{c.sg}, 4, s85')
    for k in range(6): g(f'v_permlane32_swap_b32 v{c.cs[k]}, v{cp[k]}')
    for k in range(6): g(f'v_add_f32 v{c.cs[k]}, v{c.cs[k]}, v{cp[k]}')
    g(f'ds_write_b32 v{t[0]}, v{c.cs[0]} offset:{L_CSP}')
    g(f'ds_write_b32 v{t[0]}, v{c.cs[1]} offset:{L_CSP+512}')
    for f in range(4):
        g(f'ds_write_b32 v{t[1]}, v{c.cs[2+f]} offset:{L_CSP+1024+512*f}')
    for k in cp: v.free(k)
    g(f'v_add_f32 v{c.s1[0]}, v{c.s1[0]}, v{c.s1[1]}')
    g(f'v_add_f32 v{c.s2[0]}, v{c.s2[0]}, v{c.s2[1]}')
    g(f'v_mov_b32 v{c.s1[1]}, v{c.s1[0]}')
    g(f'v_mov_b32 v{c.s2[1]}, v{c.s2[0]}')
    g('s_nop 1')
    g(f'v_permlane32_swap_b32 v{c.s1[0]}, v{c.s1[1]}')
    g(f'v_permlane32_swap_b32 v{c.s2[0]}, v{c.s2[1]}')
    g(f'v_add_f32 v{c.s1[0]}, v{c.s1[0]}, v{c.s1[1]}')
    g(f'v_add_f32 v{c.s2[0]}, v{c.s2[0]}, v{c.s2[1]}')
    c.mean = v.alloc(2); c.rstd = c.mean + 1
    c.RR = v.alloc(2)
    g(f'v_mul_f32 v{c.mean}, {fhex(1/448)}, v{c.s1[0]}')
    g(f'v_mul_f32 v{t[2]}, {fhex(1/448)}, v{c.s2[0]}')
    g(f'v_fma_f32 v{t[2]}, -v{c.mean}, v{c.mean}, v{t[2]}')
    g(f'v_max_f32 v{t[2]}, 0, v{t[2]}')
    g(f'v_add_f32 v{t[3]}, {fhex(1e-5)}, v{t[2]}')
    g(f'v_rsq_f32 v{c.rstd}, v{t[3]}')
    g('s_nop 0')
    g(f'v_mul_f32 v{t[3]}, v{c.rstd}, v{c.rstd}')
    g(f'v_mul_f32 v{t[3]}, v{t[3]}, v{t[2]}')
    g(f'v_add_f32 v{t[3]}, {fhex(1e-5)}, v{t[3]}')
    g(f'v_rsq_f32 v{t[3]}, v{t[3]}')
    g(f'v_mul_f32 v{t[4]}, v{c.mean}, v{c.rstd}')
    g(f'v_mul_f32 v{c.RR}, v{c.rstd}, v{t[3]}')
    g(f'v_mul_f32 v{c.RR+1}, v{c.RR}, v{c.mean}')
    g('s_lshl_b32 s84, s3, 8'); g(f's_add_u32 s84, s84, {L_SM}')
    g(f'v_lshl_add_u32 v{t[5]}, v{c.pi}, 2, s84')
    g(f'ds_write_b32 v{t[5]}, v{c.rstd} offset:{L_STAT}')
    last = g(f'ds_write_b32 v{t[5]}, v{t[4]} offset:{L_STAT+128}')
    g(f'v_lshlrev_b32 v{t[6]}, 3, v{c.pi}')
    g('s_lshl_b32 s84, s4, 7'); g('s_lshl_b32 s85, s3, 5'); g('s_add_u32 s84, s84, s85'); g('s_lshl_b32 s84, s84, 3')
    g(f's_add_u32 s84, s84, {OFF_ST}')
    g('s_cmp_eq_u32 s5, 0')
    g(f's_cselect_b32 s84, s84, {WS_USED}')
    g(f'buffer_store_dwordx2 {V(c.mean,2)}, v{t[6]}, s[28:31], s84 offen sc1')
    g.wait_ds(last)
    g('s_barrier')
    c.rs = v.alloc(16, 4); c.mr = v.alloc(16, 4); c.csri = v.alloc(2)
    g('s_lshl_b32 s84, s3, 8'); g(f's_add_u32 s84, s84, {L_SM}')
    g(f'v_lshl_add_u32 v{t[5]}, v{c.lh}, 6, s84')
    for k in range(4): g(f'ds_read_b128 {V(c.rs+4*k,4)}, v{t[5]} offset:{L_STAT+16*k}')
    for k in range(4): g(f'ds_read_b128 {V(c.mr+4*k,4)}, v{t[5]} offset:{L_STAT+128+16*k}')
    q = [v.alloc(4, 4) for _ in range(4)]
    g(f's_mov_b32 s85, {L_SM}')
    g(f'v_lshl_add_u32 v{t[0]}, v{c.li}, 4, s85')
    g(f'v_lshl_add_u32 v{t[1]}, v{c.lane}, 4, s85')
    g(f'ds_read_b128 {V(q[0],4)}, v{t[0]} offset:{L_CSP}')
    g(f'ds_read_b128 {V(q[1],4)}, v{t[0]} offset:{L_CSP+512}')
    g(f'ds_read_b128 {V(q[2],4)}, v{t[1]} offset:{L_CSP+1024}')
    g(f'ds_read_b128 {V(q[3],4)}, v{t[1]} offset:{L_CSP+2048}')
    g('s_lshl_b32 s84, s3, 9'); g(f's_add_u32 s84, s84, {L_SM}')
    g(f'v_lshl_add_u32 v{t[2]}, v{c.lane}, 2, s84')
    for k in range(4):
        g(f'v_add_f32 v{q[k]}, v{q[k]}, v{q[k]+1}'); g(f'v_add_f32 v{q[k]+2}, v{q[k]+2}, v{q[k]+3}')
    g(f'v_add_f32 v{c.csri}, v{q[0]}, v{q[0]+2}'); g(f'v_add_f32 v{c.csri+1}, v{q[1]}, v{q[1]+2}')
    g(f'v_add_f32 v{q[2]}, v{q[2]}, v{q[2]+2}'); g(f'v_add_f32 v{q[3]}, v{q[3]}, v{q[3]+2}')
    g(f'ds_write_b32 v{t[2]}, v{q[2]} offset:{L_CSF}')
    g(f'ds_write_b32 v{t[2]}, v{q[3]} offset:{L_CSF+256}')
    for k in q: v.free(k, 4)
    for k in t: v.free(k)
    for k in c.s1 + c.s2 + c.cs: v.free(k)

def cmad(d, a, x, e, t):
    return [f'v_fma_f32 v{t[0]}, v{a[0]}, v{x[0]}, v{e[0]}', f'v_fma_f32 v{t[1]}, v{a[0]}, v{x[1]}, v{e[1]}',
            f'v_fma_f32 v{t[0]}, -v{a[1]}, v{x[1]}, v{t[0]}', f'v_fma_f32 v{d[1]}, v{a[1]}, v{x[0]}, v{t[1]}', f'v_mov_b32 v{d[0]}, v{t[0]}']

def phase1_epiB(g, c):
    v = c.v
    K = v.alloc(2); tp = [v.alloc(2) for _ in range(3)]
    cr, ci = c.coef, c.coef + 1
    g(f'v_mul_f32 v{K}, v{cr}, v{c.csri}'); g(f'v_fmac_f32 v{K}, v{ci}, v{c.csri+1}')
    g(f'v_mul_f32 v{K+1}, v{ci}, v{c.csri}'); g(f'v_fma_f32 v{K+1}, -v{cr}, v{c.csri+1}, v{K+1}')
    LO, HI = 'op_sel_hi:[1,0]', 'op_sel:[0,1] op_sel_hi:[1,1]'
    for j in range(0, 16, 2):
        R, I_, rs, mr = V(c.accR + j, 2), V(c.accI + j, 2), V(c.rs + j, 2), V(c.mr + j, 2)
        t0, t1, t2 = V(tp[0], 2), V(tp[1], 2), V(tp[2], 2)
        cf, KK = V(c.coef, 2), V(K, 2)
        g.t(f'v_pk_mul_f32 {t0}, {R}, {cf} op_sel_hi:[1,0]')
        g.t(f'v_pk_mul_f32 {t1}, {R}, {cf} op_sel:[0,1] op_sel_hi:[1,1]')
        g.t(f'v_pk_fma_f32 {t0}, {I_}, {cf}, {t0} op_sel:[0,1,0] op_sel_hi:[1,1,1]')
        g.t(f'v_pk_fma_f32 {t1}, {I_}, {cf}, {t1} op_sel_hi:[1,0,1] neg_lo:[0,1,0] neg_hi:[0,1,0]')
        g.t(f'v_pk_mul_f32 {R}, {mr}, {KK} op_sel_hi:[1,0]')
        g.t(f'v_pk_mul_f32 {I_}, {mr}, {KK} op_sel:[0,1] op_sel_hi:[1,1]')
        g.t(f'v_pk_fma_f32 {R}, {rs}, {t0}, {R} neg_lo:[0,0,1] neg_hi:[0,0,1]')
        g.t(f'v_pk_fma_f32 {I_}, {rs}, {t1}, {I_} neg_lo:[0,0,1] neg_hi:[0,0,1]')
    ea, eb = tp[0], tp[1]
    ar, ai = c.a, c.a + 1
    prev = (c.accR, c.accI)
    for j in range(1, 16):
        d = ea if (j & 1) else eb
        g.t(f'v_fma_f32 v{d}, v{ar}, v{prev[0]}, v{c.accR+j}')
        g.t(f'v_fma_f32 v{d+1}, v{ar}, v{prev[1]}, v{c.accI+j}')
        g.t(f'v_fma_f32 v{d}, -v{ai}, v{prev[1]}, v{d}')
        g.t(f'v_fma_f32 v{d+1}, v{ai}, v{prev[0]}, v{d+1}')
        prev = (d, d + 1)
    c.Eown = ea
    assert prev[0] == ea
    ta, tb = v.alloc(), v.alloc()
    g('s_lshl_b32 s84, s3, 9')
    g(f'v_lshlrev_b32 v{ta}, 8, v{c.lh}')
    g(f'v_lshl_add_u32 v{ta}, v{c.li}, 3, v{ta}')
    g(f'v_add_u32 v{ta}, s84, v{ta}')
    g(f'v_add_u32 v{ta}, {L_SM}, v{ta}')
    last = g(f'ds_write_b64 v{ta}, {V(c.Eown,2)} offset:{L_SEG}')
    g.wait_ds(last)
    g('s_barrier')
    Es = [v.alloc(2) for _ in range(7)]
    g(f'v_lshlrev_b32 v{tb}, 3, v{c.li}')
    g(f'v_add_u32 v{tb}, {L_SM}, v{tb}')
    for s in range(6): g(f'ds_read_b64 {V(Es[s],2)}, v{tb} offset:{L_SEG+256*s}')
    g(f'v_add_u32 v{tb}, s84, v{tb}')
    g(f'ds_read_b64 {V(Es[6],2)}, v{tb} offset:{L_SEG}')
    c.P = v.alloc(2)
    g(f'v_mov_b32 v{c.P}, 0'); g(f'v_mov_b32 v{c.P+1}, 0')
    P = (c.P, c.P + 1); A16 = (c.A16, c.A16 + 1); T = (tp[2], tp[2] + 1)
    for s in range(6):
        g(f's_cmp_gt_u32 s3, {s//2}')
        g('s_cselect_b64 exec, -1, 0')
        for x in cmad(P, A16, P, (Es[s], Es[s] + 1), T): g(x)
    g('s_mov_b32 exec_lo, 0'); g('s_mov_b32 exec_hi, -1')
    for x in cmad(P, A16, P, (Es[6], Es[6] + 1), T): g(x)
    g('s_mov_b64 exec, -1')
    G4 = v.alloc(4, 4)
    for x in cmad((G4, G4 + 1), A16, P, (c.Eown, c.Eown + 1), T): g(x)
    g(f'v_mov_b32 v{G4+2}, s96'); g(f'v_mov_b32 v{G4+3}, s96')
    g(f'v_lshlrev_b32 v{ta}, 4, v{c.li}')
    g(f'v_cmp_eq_u32 vcc, 1, v{c.lh}')
    g(f'v_mov_b32 v{tb}, {WS_USED}')
    g(f'v_cndmask_b32 v{ta}, v{tb}, v{ta}, vcc')
    g('s_lshl_b32 s84, s5, 4'); g('s_add_u32 s84, s84, s4'); g('s_lshl_b32 s84, s84, 9')
    g(f's_add_u32 s84, s84, {OFF_EG}')
    g('s_cmp_eq_u32 s3, 3')
    g(f's_cselect_b32 s84, s84, {WS_USED}')
    g(f'buffer_store_dwordx4 {V(G4,4)}, v{ta}, s[28:31], s84 offen sc1')
    g('s_nop 1')
    v.free(G4, 4); v.free(ta); v.free(tb); v.free(K, 2)
    for e in Es: v.free(e, 2)
    v.free(tp[1], 2); v.free(tp[2], 2)
    v.free(c.rs, 16); v.free(c.mr, 16); v.free(c.csri, 2)

def eg_loads(g, c, first=True):
    v = c.v
    if first:
        c.EG = [v.alloc(4, 4) for _ in range(8)]
        c.egoff = v.alloc(2)
        g(f'v_lshlrev_b32 v{c.egoff}, 9, v{c.lh}')
        g(f'v_lshl_add_u32 v{c.egoff}, v{c.li}, 4, v{c.egoff}')
        g(f'v_add_u32 v{c.egoff+1}, 4096, v{c.egoff}')
    g('s_lshl_b32 s85, s5, 13')
    g(f's_add_u32 s85, s85, {OFF_EG}')
    for jj in range(8):
        g(f'buffer_load_dwordx4 {V(c.EG[jj],4)}, v{c.egoff + jj//4}, s[28:31], s85 offen offset:{(jj%4)*1024} sc1')

def gelu_frag(g, c, f, ktmp):
    v = c.v
    cs, bb, tq, pk = ktmp
    acc = c.accM[f]
    toks = []
    for Q in range(2):
        for k in range(2):
            g(f'ds_read_b128 {V(cs+8*Q+4*k,4)}, v{c.vcs} offset:{L_CSF+128*f+64*Q+16*k}')
            g(f'ds_read_b128 {V(bb+8*Q+4*k,4)}, v{c.vh32} offset:{L_B1+128*f+64*Q+16*k}')
    RR, CC = V(c.RR, 2), V(c.gc, 2)
    P = range(0, 16, 2)
    for j in P: g.t(f'v_pk_fma_f32 {V(bb+j,2)}, {V(cs+j,2)}, {RR}, {V(bb+j,2)} op_sel:[0,1,0] op_sel_hi:[1,1,1] neg_lo:[0,1,0] neg_hi:[0,1,0]')
    for j in P: g.t(f'v_pk_fma_f32 {V(acc+j,2)}, {V(acc+j,2)}, {RR}, {V(bb+j,2)} op_sel_hi:[1,0,1]')
    for j in P: g.t(f'v_pk_mul_f32 {V(tq+j,2)}, {V(acc+j,2)}, {V(acc+j,2)}')
    for j in P: g.t(f'v_pk_fma_f32 {V(tq+j,2)}, {V(tq+j,2)}, {CC}, {CC} op_sel:[0,0,1] op_sel_hi:[1,0,1]')
    for j in P: g.t(f'v_pk_mul_f32 {V(tq+j,2)}, {V(tq+j,2)}, {V(acc+j,2)}')
    for j in range(16): g.t(f'v_exp_f32 v{tq+j}, v{tq+j}')
    for j in P: g.t(f'v_pk_add_f32 {V(tq+j,2)}, {V(tq+j,2)}, 1.0 op_sel_hi:[1,0]')
    for j in range(16): g.t(f'v_rcp_f32 v{tq+j}, v{tq+j}')
    for j in P: g.t(f'v_pk_mul_f32 {V(tq+j,2)}, {V(tq+j,2)}, {V(acc+j,2)}')
    for j in P: g.t(f'v_cvt_pk_bf16_f32 v{pk+j//2}, v{tq+j}, v{tq+j+1}')
    for Q in range(2):
        g(f's_add_u32 s84, s79, {(2*f+Q)*1024}')
        toks.append(g(f'buffer_store_dwordx4 {V(pk+4*Q,4)}, v{c.vl16}, s[28:31], s84 offen sc1'))
    return toks

def flag_store(g, c, base, after_tok):
    v = c.v
    t0, t1 = v.alloc(), v.alloc()
    g('s_lshr_b32 s84, s3, 1'); g('s_lshl_b32 s85, s4, 1'); g('s_add_u32 s84, s84, s85'); g('s_lshl_b32 s84, s84, 7')
    g('s_and_b32 s85, s3, 1'); g('s_lshl_b32 s78, s5, 1'); g('s_add_u32 s85, s85, s78'); g('s_lshl_b32 s85, s85, 2')
    g('s_add_u32 s84, s84, s85'); g(f's_add_u32 s84, s84, {base}')
    g(f'v_mov_b32 v{t0}, s96')
    g(f'v_cmp_eq_u32 vcc, 0, v{c.lane}')
    g(f'v_mov_b32 v{t1}, {WS_USED}')
    g(f'v_cndmask_b32 v{t1}, v{t1}, 0, vcc')
    g.wait_vm(after_tok)
    tok = g(f'buffer_store_dword v{t0}, v{t1}, s[28:31], s84 offen sc1')
    v.free(t0); v.free(t1)
    return tok

def phase1_gelu(g, c, hooks=None):
    v = c.v
    c.vh32 = v.alloc(); c.vl16 = v.alloc(); c.gc = v.alloc(2)
    g(f'v_lshlrev_b32 v{c.vh32}, 5, v{c.lh}')
    g(f'v_add_u32 v{c.vh32}, {L_SM}, v{c.vh32}')
    c.vcs = v.alloc()
    g('s_lshl_b32 s84, s3, 9')
    g(f'v_add_u32 v{c.vcs}, s84, v{c.vh32}')
    g(f'v_lshlrev_b32 v{c.vl16}, 4, v{c.lane}')
    C1 = -2.0 * LOG2E * 0.7978845608028654
    g(f'v_mov_b32 v{c.gc}, {fhex(C1*0.044715)}')
    g(f'v_mov_b32 v{c.gc+1}, {fhex(C1)}')
    g('s_lshl_b32 s79, s4, 2'); g('s_add_u32 s79, s79, s3'); g('s_mul_i32 s79, s79, 112'); g('s_lshl_b32 s84, s5, 3')
    g('s_add_u32 s79, s79, s84'); g('s_lshl_b32 s79, s79, 10')
    if OFF_HM: g(f's_add_u32 s79, s79, {OFF_HM}')
    ktmp = (v.alloc(16, 4), v.alloc(16, 4), v.alloc(16, 4), v.alloc(8, 4))
    last = None
    for f in range(4):
        last = gelu_frag(g, c, f, ktmp)[-1]
        if hooks and f in hooks: hooks[f]()
        v.free(c.accM[f], 16)
    for r, n in zip(ktmp, (16, 16, 16, 8)): v.free(r, n)
    v.free(c.vh32); v.free(c.vcs); v.free(c.gc, 2); v.free(c.RR, 2)
    return last

def phase1_epiD(g, c):
    v = c.v
    T = v.alloc(2); G = v.alloc(2); U = v.alloc(2)
    g.label('L_egchk')
    g('s_mov_b64 s[80:81], 0')
    for jj in range(8):
        g(f'v_cmp_ne_u32 vcc, s96, v{c.EG[jj]+2}')
        g(f's_and_b64 vcc, vcc, s[{60+2*jj}:{61+2*jj}]')
        g('s_or_b64 s[80:81], s[80:81], vcc')
    g('s_cmp_eq_u64 s[80:81], 0')
    g('s_cbranch_scc1 L_egok')
    g.save()
    g('s_add_u32 s82, s82, 1')
    g('s_cmp_gt_u32 s82, 0x8000')
    g('s_cbranch_scc1 L_egok')
    g('s_sleep 1')
    eg_loads(g, c, first=False)
    g('s_waitcnt vmcnt(0)')
    g('s_branch L_egchk')
    g.restore()
    g.label('L_egok')
    g.stamp(7)
    g(f'v_mov_b32 v{G}, 0'); g(f'v_mov_b32 v{G+1}, 0')
    A256 = (c.A256, c.A256 + 1); A128 = (c.A128, c.A128 + 1)
    for jj in range(8):
        g(f's_mov_b64 exec, s[{60+2*jj}:{61+2*jj}]')
        for x in cmad((G, G + 1), A256, (G, G + 1), (c.EG[jj], c.EG[jj] + 1), (T, T + 1)): g(x)
    g('s_and_b32 s84, s4, 1')
    g('s_cmp_eq_u32 s84, 1')
    g('s_cselect_b32 exec_lo, 0, -1')
    g('s_cselect_b32 exec_hi, -1, 0')
    g(f'v_mul_f32 v{T}, v{A128[0]}, v{G}'); g(f'v_mul_f32 v{T+1}, v{A128[0]}, v{G+1}')
    g(f'v_fma_f32 v{T}, -v{A128[1]}, v{G+1}, v{T}'); g(f'v_fma_f32 v{G+1}, v{A128[1]}, v{G}, v{T+1}'); g(f'v_mov_b32 v{G}, v{T}')
    g('s_mov_b64 exec, -1')
    g(f'v_mov_b32 v{T}, v{G}'); g(f'v_mov_b32 v{T+1}, v{G+1}')
    g('s_nop 1')
    g(f'v_permlane32_swap_b32 v{G}, v{T}')
    g(f'v_permlane32_swap_b32 v{G+1}, v{T+1}')
    g(f'v_add_f32 v{G}, v{G}, v{T}'); g(f'v_add_f32 v{G+1}, v{G+1}, v{T+1}')
    for x in cmad((U, U + 1), (c.A16s, c.A16s + 1), (G, G + 1), (c.P, c.P + 1), (T, T + 1)): g(x)
    if getattr(c, 'dbg_carry', False):
        D4 = v.alloc(4, 4); dv = v.alloc()
        g(f'v_mov_b32 v{D4}, v{U}'); g(f'v_mov_b32 v{D4+1}, v{U+1}'); g(f'v_mov_b32 v{D4+2}, v{c.A16s}'); g(f'v_mov_b32 v{D4+3}, v{c.A16s+1}')
        g(f'v_lshlrev_b32 v{dv}, 4, v0')
        g('s_lshl_b32 s84, s4, 4'); g('s_add_u32 s84, s84, s5'); g('s_lshl_b32 s84, s84, 12'); g(f's_add_u32 s84, s84, {OFF_DBG}')
        g(f'buffer_store_dwordx4 {V(D4,4)}, v{dv}, s[28:31], s84 offen')
        g('s_nop 1')
        v.free(D4, 4); v.free(dv)
    ar, ai = c.a, c.a + 1
    prev = (U, U + 1)
    for j in range(16):
        R, I_ = c.accR + j, c.accI + j
        g.t(f'v_fmac_f32 v{R}, v{ar}, v{prev[0]}')
        g.t(f'v_fmac_f32 v{I_}, v{ar}, v{prev[1]}')
        g.t(f'v_fma_f32 v{R}, -v{ai}, v{prev[1]}, v{R}')
        g.t(f'v_fmac_f32 v{I_}, v{ai}, v{prev[0]}')
        prev = (R, I_)
    for e in c.EG: v.free(e, 4)
    v.free(c.egoff, 2)
    pk = v.alloc(16, 4); D = [v.alloc(16, 4), v.alloc(16, 4)]
    for part, acc in enumerate((c.accR, c.accI)):
        for j in range(0, 16, 2): g(f'v_cvt_pk_bf16_f32 v{pk+8*part+j//2}, v{acc+j}, v{acc+j+1}')
    for part in range(2):
        g(f'v_mfma_f32_32x32x16_bf16 {V(D[part],16)}, {V(pk+8*part,4)}, {V(c.idf[0],4)}, 0')
    for part in range(2):
        g(f'v_mfma_f32_32x32x16_bf16 {V(D[part],16)}, {V(pk+8*part+4,4)}, {V(c.idf[1],4)}, {V(D[part],16)}')
    g('s_lshl_b32 s78, s4, 2'); g('s_add_u32 s78, s78, s3'); g('s_mul_i32 s78, s78, 56'); g('s_lshl_b32 s84, s5, 1')
    g('s_add_u32 s78, s78, s84'); g('s_lshl_b32 s78, s78, 10'); g(f's_add_u32 s78, s78, {OFF_HS}')
    last = None
    for part in range(2):
        for j in range(0, 16, 2): g(f'v_cvt_pk_bf16_f32 v{pk+8*part+j//2}, v{D[part]+j}, v{D[part]+j+1}')
        for Q in range(2):
            g(f's_add_u32 s84, s78, {(28*part+Q)*1024}')
            last = g(f'buffer_store_dwordx4 {V(pk+8*part+4*Q,4)}, v{c.vl16}, s[28:31], s84 offen sc1')
    v.free(pk, 16); v.free(D[0], 16); v.free(D[1], 16)
    v.free(T, 2); v.free(G, 2); v.free(U, 2)
    v.free(c.accR, 16); v.free(c.accI, 16)
    return last
```

```python
from asmlib import *
from consts import *
from phase1 import interleave, merge

W2_WAVE = 36864
NSLOT = 9

def w2_setup(g, c):
    v = c.v
    L, I, H = c.lane, c.li, c.lh
    t = [v.alloc() for _ in range(6)]
    c.vo2 = [v.alloc() for _ in range(4)]; c.voc = [v.alloc() for _ in range(4)]
    c.a2 = [v.alloc(), v.alloc()]; c.ac = [v.alloc(), v.alloc()]
    g('s_mov_b32 s84, 896')
    g(f'v_lshrrev_b32 v{t[0]}, 3, v{L}')
    g(f'v_mul_lo_u32 v{t[0]}, v{t[0]}, s84')
    g(f'v_bfe_u32 v{t[1]}, v{L}, 4, 1')
    g(f'v_lshlrev_b32 v{t[1]}, 2, v{t[1]}')
    g(f'v_and_b32 v{t[2]}, 7, v{L}')
    g(f'v_xor_b32 v{t[1]}, v{t[1]}, v{t[2]}')
    g(f'v_lshl_add_u32 v{c.vo2[0]}, v{t[1]}, 4, v{t[0]}')
    for mm in range(1, 4): g(f'v_add_u32 v{c.vo2[mm]}, {mm*(8*896-1024)}, v{c.vo2[0]}')
    g(f'v_lshrrev_b32 v{t[0]}, 2, v{L}')
    g(f'v_mul_lo_u32 v{t[0]}, v{t[0]}, s84')
    g(f'v_lshrrev_b32 v{t[1]}, 4, v{L}')
    g(f'v_and_b32 v{t[2]}, 3, v{L}')
    g(f'v_xor_b32 v{t[1]}, v{t[1]}, v{t[2]}')
    g(f'v_lshl_add_u32 v{c.voc[0]}, v{t[1]}, 4, v{t[0]}')
    for mm in range(1, 4): g(f'v_add_u32 v{c.voc[mm]}, {mm*(16*896-1024)}, v{c.voc[0]}')
    g(f's_mul_i32 s44, s3, {W2_WAVE}')
    g(f'v_bfe_u32 v{t[0]}, v{L}, 2, 2')
    g(f'v_lshl_add_u32 v{t[1]}, v{H}, 3, v{t[0]}')
    g(f'v_lshlrev_b32 v{t[1]}, 7, v{t[1]}')
    g(f'v_bfe_u32 v{t[2]}, v{L}, 4, 1')
    g(f'v_lshlrev_b32 v{t[2]}, 1, v{t[2]}')
    g(f'v_bfe_u32 v{t[3]}, v{L}, 1, 1')
    g(f'v_add_u32 v{t[2]}, v{t[2]}, v{t[3]}')
    g(f'v_lshl_add_u32 v{t[1]}, v{t[2]}, 4, v{t[1]}')
    g(f'v_and_b32 v{t[3]}, 1, v{L}')
    g(f'v_lshl_add_u32 v{t[1]}, v{t[3]}, 3, v{t[1]}')
    g(f'v_add_u32 v{t[1]}, s44, v{t[1]}')
    g(f'v_lshrrev_b32 v{t[0]}, 1, v{t[0]}')
    for cf in range(2):
        g(f'v_xor_b32 v{t[2]}, {cf}, v{t[0]}')
        g(f'v_lshl_add_u32 v{c.a2[cf]}, v{t[2]}, 6, v{t[1]}')
    g(f'v_lshlrev_b32 v{t[0]}, 6, v{I}')
    g(f'v_add_u32 v{t[0]}, s44, v{t[0]}')
    g(f'v_bfe_u32 v{t[1]}, v{I}, 2, 2')
    g(f'v_xor_b32 v{t[1]}, v{t[1]}, v{H}')
    for ks2 in range(2):
        g(f'v_xor_b32 v{t[2]}, {2*ks2}, v{t[1]}')
        g(f'v_lshl_add_u32 v{c.ac[ks2]}, v{t[2]}, 4, v{t[0]}')
    g(f's_mul_i32 s45, s3, {448*896}'); g('s_lshl_b32 s84, s7, 7'); g('s_add_u32 s45, s45, s84')
    g(f's_mul_i32 s46, s7, {64*896}'); g('s_and_b32 s84, s3, 1'); g('s_mul_i32 s84, s84, 448'); g('s_add_u32 s46, s46, s84')
    g('s_mul_i32 s84, s9, 7'); g('s_add_u32 s84, s84, 1'); g('s_lshr_b32 s84, s84, 1')
    g('s_lshl_b32 s47, s7, 1'); g('s_add_u32 s47, s47, s84')
    g('s_cmp_ge_u32 s47, 14'); g('s_cselect_b32 s84, 14, 0'); g('s_sub_u32 s47, s47, s84')
    g('s_mov_b32 s48, s8')
    g('s_mov_b32 s49, s47'); g('s_mov_b32 s50, s48')
    for k in t: v.free(k)

def unit_dma_items(g, c, pos):
    slot = pos % NSLOT
    def mk(mm):
        def f():
            if mm == 0:
                if pos < 14:
                    g(f's_mul_i32 s51, s49, {32*896}'); g(f's_add_u32 m0, s44, {slot*4096}'); g('s_add_u32 s51, s51, s45')
                    g('s_add_u32 s49, s49, 1'); g('s_cmp_eq_u32 s49, 14'); g('s_cselect_b32 s49, 0, s49')
                else:
                    g('s_lshl_b32 s51, s50, 6'); g(f's_add_u32 m0, s44, {slot*4096}'); g('s_add_u32 s51, s51, s46')
                    g('s_add_u32 s50, s50, 1'); g('s_cmp_eq_u32 s50, 7'); g('s_cselect_b32 s50, 0, s50')
            if pos < 14: tok = g(f'buffer_load_dwordx4 v{c.vo2[mm]}, s[36:39], s51 offen offset:{1024*mm} lds')
            else: tok = g(f'buffer_load_dwordx4 v{c.voc[mm]}, s[32:35], s51 offen offset:{1024*mm} lds')
            c.utok[pos] = tok
        return f
    return [mk(mm) for mm in range(4)]

def w2_background(g, c):
    for pos in range(NSLOT):
        for it in unit_dma_items(g, c, pos): g.bg(it)
    for pos in range(16):
        def cp(pos=pos):
            g.wait_vm(c.utok[pos])
            last = None
            for r in unit_reads(c, pos, lambda ks2, cf: pos*16 + ks2*8 + cf*4, 'a'): last = g(r)
            c.ulast[pos] = last
        g.bg(cp)
        if pos + NSLOT <= 20:
            items = unit_dma_items(g, c, pos + NSLOT)
            def first(pos=pos, it=items[0]):
                g.wait_ds(c.ulast[pos]); it()
            g.bg(first)
            for it in items[1:]: g.bg(it)

def unit_reads(c, pos, dst, kind):
    slot = pos % NSLOT
    out = []
    for ks2 in range(2):
        for cf in range(2):
            b = dst(ks2, cf)
            if pos < 14:
                for jj in range(2):
                    out.append(f'ds_read_b64_tr_b16 {rng(kind, b+2*jj, 2)}, v{c.a2[cf]} offset:{slot*4096 + ks2*2048 + jj*512}')
            else:
                out.append(f'ds_read_b128 {rng(kind, b, 4)}, v{c.ac[ks2]} offset:{slot*4096 + cf*2048}')
    return out

def poll_flags(g, c, base, name, cnt_s):
    v = c.v
    t0, t1 = c.pollv
    g(f's_lshl_b32 s84, s6, 7'); g(f's_add_u32 s84, s84, {base}')
    g(f's_mov_b32 s{cnt_s}, 0')
    g.label(f'L_{name}_chk')
    g(f'buffer_load_dword v{t1}, v{t0}, s[28:31], s84 offen sc1')
    g('s_waitcnt vmcnt(0)')
    g(f'v_cmp_ne_u32 vcc, s96, v{t1}')
    g('s_and_b64 vcc, vcc, s[52:53]')
    g(f's_cbranch_vccz L_{name}_ok')
    g(f's_add_u32 s{cnt_s}, s{cnt_s}, 1')
    g(f's_cmp_gt_u32 s{cnt_s}, 0x8000')
    g(f's_cbranch_scc1 L_{name}_ok')
    g('s_sleep 1')
    g(f's_branch L_{name}_chk')
    g.label(f'L_{name}_ok')

def poll_issue(g, c, base):
    t0, t1 = c.pollv
    g(f's_lshl_b32 s57, s6, 7'); g(f's_add_u32 s57, s57, {base}')
    g(f'buffer_load_dword v{t1}, v{t0}, s[28:31], s57 offen sc1')

def poll_check(g, c, name):
    t0, t1 = c.pollv
    g('s_mov_b32 s84, 0')
    g.label(f'L_{name}_chk')
    g(f'v_cmp_ne_u32 vcc, s96, v{t1}')
    g('s_and_b64 vcc, vcc, s[52:53]')
    g(f's_cbranch_vccz L_{name}_ok')
    g.save()
    g('s_add_u32 s84, s84, 1')
    g('s_cmp_gt_u32 s84, 0x8000')
    g(f's_cbranch_scc1 L_{name}_ok')
    g('s_sleep 1')
    g(f'buffer_load_dword v{t1}, v{t0}, s[28:31], s57 offen sc1')
    g('s_waitcnt vmcnt(0)')
    g(f's_branch L_{name}_chk')
    g.restore()
    g.label(f'L_{name}_ok')

def phase2_main(g, c, depth=6, fused=True):
    v = c.v
    acc = {k: [[v.alloc(16, 4) for _ in range(2)] for _ in range(2)] for k in 'ms'}
    c.acc2 = acc
    ab = [[v.alloc(4, 4), v.alloc(4, 4)] for _ in range(depth)]
    wl = [[v.alloc(4, 4), v.alloc(4, 4)] for _ in range(2)]
    voA = v.alloc(); voM1 = v.alloc(); voS1 = v.alloc()
    g(f'v_lshlrev_b32 v{voA}, 4, v{c.lane}')
    g(f'v_add_u32 v{voM1}, {112*1024}, v{voA}')
    g(f'v_add_u32 v{voS1}, {56*1024}, v{voA}')
    g('s_lshl_b32 s54, s6, 1'); g('s_mul_i32 s84, s54, 112'); g('s_mul_i32 s85, s3, 28'); g('s_add_u32 s84, s84, s85'); g('s_lshl_b32 s84, s84, 10')
    g('s_mul_i32 s55, s54, 56'); g('s_mul_i32 s85, s3, 14'); g('s_add_u32 s55, s55, s85'); g('s_lshl_b32 s55, s55, 10'); g(f's_add_u32 s55, s55, {OFF_HS}')
    g(f's_add_u32 s54, s84, {OFF_HM}')
    g('s_mov_b32 s49, s47'); g('s_mov_b32 s50, s48')
    steps = [(pos, ks2) for pos in range(21) for ks2 in range(2)]
    def a_load(n):
        pos, ks2 = steps[n]
        if ks2 == 0:
            if pos < 14:
                g('s_lshl_b32 s56, s49, 11'); g('s_add_u32 s56, s56, s54')
                g('s_add_u32 s49, s49, 1'); g('s_cmp_eq_u32 s49, 14'); g('s_cselect_b32 s49, 0, s49')
            else:
                g('s_lshl_b32 s56, s50, 11'); g('s_add_u32 s56, s56, s55')
                g('s_add_u32 s50, s50, 1'); g('s_cmp_eq_u32 s50, 7'); g('s_cselect_b32 s50, 0, s50')
        b = ab[n % depth]
        v1 = voM1 if pos < 14 else voS1
        g(f'buffer_load_dwordx4 {V(b[0],4)}, v{voA}, s[28:31], s56 offen offset:{ks2*1024} sc1')
        g(f'buffer_load_dwordx4 {V(b[1],4)}, v{v1}, s[28:31], s56 offen offset:{ks2*1024} sc1')
    def w_reads(n):
        pos, ks2 = steps[n]
        slot = pos % NSLOT
        r = []
        for cf in range(2):
            r.append(f'ds_read_b128 {V(wl[n&1][cf],4)}, v{c.ac[ks2]} offset:{slot*4096 + cf*2048}')
        return r
    first_s = 28
    if fused: poll_flags(g, c, OFF_FM, 'pm', 85)
    g.stamp(12)
    for n in range(depth): a_load(n)
    for pos in range(16, 21): g.wait_vm(c.utok[pos])
    polled_s = False
    for n, (pos, ks2) in enumerate(steps):
        k = 'm' if pos < 14 else 's'
        firstk = (n == 0) or (n == first_s)
        b = ab[n % depth]
        mf = []
        for rf in range(2):
            for cf in range(2):
                W = A(pos*16 + ks2*8 + cf*4, 4) if pos < 16 else V(wl[n & 1][cf], 4)
                C = '0' if firstk else V(acc[k][rf][cf], 16)
                mf.append(f'v_mfma_f32_32x32x16_bf16 {V(acc[k][rf][cf],16)}, {V(b[rf],4)}, {W}, {C}')
        fill = []
        if n + 1 < len(steps) and steps[n + 1][0] >= 16: fill += w_reads(n + 1)
        g(mf[0]); g(mf[1])
        for f in fill: g(f)
        g(mf[2]); g(mf[3])
        nn = n + depth
        if nn < len(steps):
            if nn == first_s - 8 and fused: poll_issue(g, c, OFF_FS)
            if nn == first_s and fused:
                poll_check(g, c, 'ps')
                c.after_hs_poll(g, c)
            a_load(nn)
    g.stamp(13)
    for b in ab: v.free(b[0], 4); v.free(b[1], 4)
    for b in wl: v.free(b[0], 4); v.free(b[1], 4)
    v.free(voA); v.free(voM1); v.free(voS1)

def phase2_final(g, c):
    v = c.v
    acc = c.acc2
    xs = v.alloc(16, 4); st = v.alloc(32, 4); dk = v.alloc(); b2 = v.alloc()
    t = [v.alloc() for _ in range(4)]
    g('s_lshl_b32 s58, s6, 6'); g('s_lshr_b32 s84, s3, 1'); g('s_lshl_b32 s84, s84, 5'); g('s_add_u32 s58, s58, s84')
    g('s_lshl_b32 s59, s7, 6'); g('s_and_b32 s84, s3, 1'); g('s_lshl_b32 s84, s84, 5'); g('s_add_u32 s59, s59, s84')
    g(f'v_add_u32 v{t[0]}, s59, v{c.li}'); g(f'v_lshlrev_b32 v{t[0]}, 1, v{t[0]}')
    g(f'global_load_ushort v{dk}, v{t[0]}, s[98:99]')
    g(f'global_load_ushort v{b2}, v{t[0]}, s[100:101]')
    g(f'v_mul_u32_u24 v{t[1]}, {16*896}, v{c.lh}'); g(f'v_add_u32 v{t[1]}, v{t[1]}, v{t[0]}')
    g('s_mul_i32 s84, s58, 896')
    for jj in range(16):
        g(f'buffer_load_ushort v{xs+jj}, v{t[1]}, s[12:15], s84 offen')
        if jj < 15: g('s_add_u32 s84, s84, 896')
    g(f'v_lshlrev_b32 v{t[2]}, 7, v{c.lh}')
    g('s_lshl_b32 s84, s58, 3'); g(f's_add_u32 s84, s84, {OFF_ST}')
    for k in range(8):
        g(f'buffer_load_dwordx4 {V(st+4*k,4)}, v{t[2]}, s[28:31], s84 offen offset:{16*k} sc1')
    g(f'v_lshlrev_b32 v{t[2]}, 4, v{c.lane}')
    g(f'v_add_u32 v{t[3]}, s44, v{t[2]}')
    last = None
    for qd in range(4):
        rf, cf = qd >> 1, qd & 1
        for ki, k in enumerate('ms'):
            for q in range(4):
                last = g(f'ds_write_b128 v{t[3]}, {V(acc[k][rf][cf]+4*q,4)} offset:{qd*8192 + ki*4096 + q*1024}')
    g.wait_ds(last)
    g('s_barrier')
    g.stamp(14)
    g('s_lshl_b32 s84, s3, 13')
    g(f'v_add_u32 v{t[3]}, s84, v{t[2]}')
    M, Sx = acc['m'][0][0], acc['s'][0][0]
    tmp = [acc['m'][0][1], acc['m'][1][0], acc['m'][1][1], acc['s'][0][1], acc['s'][1][0], acc['s'][1][1]]
    for src in range(4):
        dM = M if src == 0 else tmp[src - 1]
        dS = Sx if src == 0 else tmp[2 + src]
        for q in range(4):
            g(f'ds_read_b128 {V(dM+4*q,4)}, v{t[3]} offset:{src*W2_WAVE % 65536 if src*W2_WAVE + 4096 + 3072 < 65536 else 0}' if False else
              f'ds_read_b128 {V(dM+4*q,4)}, v{t[3]} offset:{q*1024}')
            g(f'ds_read_b128 {V(dS+4*q,4)}, v{t[3]} offset:{4096 + q*1024}')
        if src < 3: g(f'v_add_u32 v{t[3]}, {W2_WAVE}, v{t[3]}')
    for src in range(1, 4):
        for j in range(0, 16, 2):
            g(f'v_pk_add_f32 {V(M+j,2)}, {V(M+j,2)}, {V(tmp[src-1]+j,2)}')
            g(f'v_pk_add_f32 {V(Sx+j,2)}, {V(Sx+j,2)}, {V(tmp[2+src]+j,2)}')
    g(f'v_lshlrev_b32 v{dk}, 16, v{dk}'); g(f'v_lshlrev_b32 v{b2}, 16, v{b2}')
    T1, T2 = tmp[0], tmp[1]
    for j in range(16): g(f'v_lshlrev_b32 v{xs+j}, 16, v{xs+j}')
    for j in range(16): g(f'v_add_f32 v{M+j}, v{M+j}, v{b2}')
    for j in range(16): g(f'v_mul_f32 v{T1+j}, {fhex(-LOG2E)}, v{M+j}')
    for j in range(16): g(f'v_exp_f32 v{T1+j}, v{T1+j}')
    for j in range(16): g(f'v_sub_f32 v{T2+j}, v{xs+j}, v{st+2*j}')
    for j in range(16): g(f'v_add_f32 v{T1+j}, 1.0, v{T1+j}')
    for j in range(16): g(f'v_rcp_f32 v{T1+j}, v{T1+j}')
    for j in range(16): g(f'v_mul_f32 v{T2+j}, v{T2+j}, v{st+2*j+1}')
    for j in range(16): g(f'v_fmac_f32 v{Sx+j}, v{T2+j}, v{dk}')
    for j in range(16): g(f'v_mul_f32 v{M+j}, v{M+j}, v{T1+j}')
    for j in range(16): g(f'v_fma_f32 v{M+j}, v{Sx+j}, v{M+j}, v{xs+j}')
    g(f'v_add_u32 v{t[0]}, s59, v{c.li}'); g(f'v_lshlrev_b32 v{t[0]}, 2, v{t[0]}')
    g(f'v_mul_u32_u24 v{t[1]}, {16*1792}, v{c.lh}'); g(f'v_add_u32 v{t[1]}, v{t[1]}, v{t[0]}')
    g('s_mul_i32 s84, s58, 1792')
    for jj in range(16):
        g(f'buffer_store_dword v{M+jj}, v{t[1]}, s[40:43], s84 offen')
        if jj < 15: g('s_add_u32 s84, s84, 1792')
```

```python
import sys
from asmlib import *
from consts import *
import phase1 as p1, phase2 as p2

def build(path, opts=()):
    g = Gen(); c = p1.Ctx()
    c.v = Regs('v', 1, 255); c.s = None
    nt = ' nt' if 'nt' in opts else ''
    c.dbg_carry = 'dbgcarry' in opts
    c.opts = opts
    g.raw(p1.header([f'; @launch grid=(224,1,1) block=(256,1,1) lds={LDS_BYTES}']).rstrip('\n'))
    g.raw('.amdgcn_target "amdgcn-amd-amdhsa--gfx950"\n.text\n.globl %s\n.p2align 8\n.type %s,@function\n%s:' % (NAME, NAME, NAME))
    if 'stamps' in opts:
        g.stamp_v = 255; g.stamp_s = 10; c.v = Regs('v', 1, 254)
        g('v_mov_b32 v255, 0')
        g.stamp(0)
    p1.prologue(g, c)
    g('s_mov_b32 s97, 0')
    p1.small_loads(g, c)
    p1.phase1_setup(g, c)
    p1.phase1_lds_addrs(g, c)
    def early(g, c):
        p1.early(g, c)
    c.early = early
    p1.phase1_main(g, c, nt)
    p1.phase1_epiA(g, c)
    g.stamp(4)
    c.utok = {}; c.ulast = {}
    p2.w2_setup(g, c)
    p2.w2_background(g, c)
    g.pace = int(next((o[5:] for o in opts if o.startswith('pace=')), 22)); g.cnt = 0
    p1.phase1_epiB(g, c)
    g.stamp(5)
    hooks = {1: lambda: p1.eg_loads(g, c)}
    hm_last = p1.phase1_gelu(g, c, hooks)
    g.stamp(6)
    g('s_mov_b32 s82, 0')
    hs_last = p1.phase1_epiD(g, c)
    g.stamp(8)
    p1.flag_store(g, c, OFF_FM, hm_last)
    g.stamp(9)
    g.bg_flush(int(next((o[3:] for o in opts if o.startswith('nf=')), 12)))
    p1.flag_store(g, c, OFF_FS, hs_last)
    g.stamp(10)
    g.bg_flush()
    g.stamp(11)
    v = c.v
    for r in (c.a, c.A16, c.A16s, c.A128, c.A256, c.coef, c.P, c.mean, c.Eown): v.free(r, 2)
    for r in c.idf: v.free(r, 4)
    for r in (c.zr2, c.zi_rev, c.pi, c.sg, c.vl16): v.free(r)
    c.pollv = (c.v.alloc(), c.v.alloc())
    g(f'v_min_u32 v{c.pollv[0]}, 27, v{c.lane}'); g(f'v_lshlrev_b32 v{c.pollv[0]}, 2, v{c.pollv[0]}')
    g('s_mov_b32 s52, 0x0fffffff'); g('s_mov_b32 s53, 0')
    def after_hs(g, c):
        t0, t1 = c.v.alloc(), c.v.alloc()
        g('s_cmp_eq_u32 s6, 31'); g('s_cselect_b32 s84, 0, 1'); g('s_or_b32 s84, s84, s7'); g('s_or_b32 s84, s84, s3')
        g(f's_mov_b32 s85, {WS_USED}'); g('s_cmp_eq_u32 s84, 0'); g(f's_cselect_b32 s84, {OFF_X}, s85')
        g('s_add_u32 s85, s97, 1')
        g(f'v_mov_b32 v{t0}, s85')
        g(f'v_cmp_eq_u32 vcc, 0, v{c.lane}')
        g(f'v_mov_b32 v{t1}, {WS_USED}')
        g(f'v_cndmask_b32 v{t1}, v{t1}, 0, vcc')
        g(f'buffer_store_dword v{t0}, v{t1}, s[28:31], s84 offen sc1')
        c.v.free(t0); c.v.free(t1)
    c.after_hs_poll = after_hs
    p2.phase2_main(g, c)
    p2.phase2_final(g, c)
    if 'stamps' in opts:
        g('s_waitcnt vmcnt(0)')
        g.stamp(15)
        g('v_lshlrev_b32 v1, 2, v0')
        g('s_lshl_b32 s84, s2, 10'); g(f's_add_u32 s84, s84, {OFF_DBG}')
        g('buffer_store_dword v255, v1, s[28:31], s84 offen')
    g.label('L_exit')
    g('s_endpgm')
    txt = g.finalize(verbose=True)
    txt = txt.replace('    s_mul_i32 s96, s96, 0x9E3779B1', '    s_mov_b32 s97, s96\n    s_mul_i32 s96, s96, 0x9E3779B1')
    txt += f'''.section .rodata,"a"
.p2align 6
.amdhsa_kernel {NAME}
  .amdhsa_next_free_vgpr 512
  .amdhsa_next_free_sgpr 102
  .amdhsa_accum_offset 256
  .amdhsa_group_segment_fixed_size 0
  .amdhsa_kernarg_size 136
  .amdhsa_user_sgpr_count 2
  .amdhsa_user_sgpr_kernarg_segment_ptr 1
  .amdhsa_system_sgpr_workgroup_id_x 1
.end_amdhsa_kernel
'''
    open(path, 'w').write(txt)
    print('max arch vgpr', c.v.maxused, 'bytes', len(txt))

if __name__ == '__main__':
    build(sys.argv[1], sys.argv[2:])
```

```python
import sys
from asmlib import *
from consts import *
import phase1 as p1, phase2 as p2

def build(path, opts=()):
    g = Gen(); c = p1.Ctx()
    c.v = Regs('v', 1, 255); c.s = None
    nt = ' nt' if 'nt' in opts else ''
    c.dbg_carry = 'dbgcarry' in opts
    c.opts = opts
    g.raw(p1.header([f'; @launch grid=(224,1,1) block=(256,1,1) lds={LDS_BYTES}']).rstrip('\n'))
    g.raw('.amdgcn_target "amdgcn-amd-amdhsa--gfx950"\n.text\n.globl %s\n.p2align 8\n.type %s,@function\n%s:' % (NAME, NAME, NAME))
    if 'stamps' in opts:
        g.stamp_v = 255; g.stamp_s = 10; c.v = Regs('v', 1, 254)
        g('v_mov_b32 v255, 0')
        g.stamp(0)
    p1.prologue(g, c)
    g('s_mov_b32 s97, 0')
    p1.small_loads(g, c)
    p1.phase1_setup(g, c)
    p1.phase1_lds_addrs(g, c)
    def early(g, c):
        p1.early(g, c)
    c.early = early
    p1.phase1_main(g, c, nt)
    p1.phase1_epiA(g, c)
    g.stamp(4)
    c.utok = {}; c.ulast = {}
    p2.w2_setup(g, c)
    p2.w2_background(g, c)
    g.pace = int(next((o[5:] for o in opts if o.startswith('pace=')), 22)); g.cnt = 0
    p1.phase1_epiB(g, c)
    g.stamp(5)
    hooks = {1: lambda: p1.eg_loads(g, c)}
    hm_last = p1.phase1_gelu(g, c, hooks)
    g.stamp(6)
    g('s_mov_b32 s82, 0')
    hs_last = p1.phase1_epiD(g, c)
    g.stamp(8)
    p1.flag_store(g, c, OFF_FM, hm_last)
    g.stamp(9)
    g.bg_flush(int(next((o[3:] for o in opts if o.startswith('nf=')), 12)))
    p1.flag_store(g, c, OFF_FS, hs_last)
    g.stamp(10)
    g.bg_flush()
    g.stamp(11)
    v = c.v
    for r in (c.a, c.A16, c.A16s, c.A128, c.A256, c.coef, c.P, c.mean, c.Eown): v.free(r, 2)
    for r in c.idf: v.free(r, 4)
    for r in (c.zr2, c.zi_rev, c.pi, c.sg, c.vl16): v.free(r)
    c.pollv = (c.v.alloc(), c.v.alloc())
    g(f'v_min_u32 v{c.pollv[0]}, 27, v{c.lane}'); g(f'v_lshlrev_b32 v{c.pollv[0]}, 2, v{c.pollv[0]}')
    g('s_mov_b32 s52, 0x0fffffff'); g('s_mov_b32 s53, 0')
    def after_hs(g, c):
        t0, t1 = c.v.alloc(), c.v.alloc()
        g('s_cmp_eq_u32 s6, 31'); g('s_cselect_b32 s84, 0, 1'); g('s_or_b32 s84, s84, s7'); g('s_or_b32 s84, s84, s3')
        g(f's_mov_b32 s85, {WS_USED}'); g('s_cmp_eq_u32 s84, 0'); g(f's_cselect_b32 s84, {OFF_X}, s85')
        g('s_add_u32 s85, s97, 1')
        g(f'v_mov_b32 v{t0}, s85')
        g(f'v_cmp_eq_u32 vcc, 0, v{c.lane}')
        g(f'v_mov_b32 v{t1}, {WS_USED}')
        g(f'v_cndmask_b32 v{t1}, v{t1}, 0, vcc')
        g(f'buffer_store_dword v{t0}, v{t1}, s[28:31], s84 offen sc1')
        c.v.free(t0); c.v.free(t1)
    c.after_hs_poll = after_hs
    p2.phase2_main(g, c)
    p2.phase2_final(g, c)
    if 'stamps' in opts:
        g('s_waitcnt vmcnt(0)')
        g.stamp(15)
        g('v_lshlrev_b32 v1, 2, v0')
        g('s_lshl_b32 s84, s2, 10'); g(f's_add_u32 s84, s84, {OFF_DBG}')
        g('buffer_store_dword v255, v1, s[28:31], s84 offen')
        if 'dbgout' in opts:
            g('s_load_dwordx2 s[4:5], s[0:1], 120'); g('s_waitcnt lgkmcnt(0)')
            g('v_readlane_b32 s6, v255, 0'); g('v_readlane_b32 s7, v255, 15')
            g('s_mov_b32 s8, s4'); g('s_and_b32 s9, s5, 0xffff'); g('s_mov_b32 s10, 256'); g('s_mov_b32 s11, 0x20000')
            g('s_not_b32 s6, s6')
            g('v_mov_b32 v2, s7'); g('v_mov_b32 v3, s6'); g('v_mov_b32 v4, 0'); g('v_mov_b32 v5, 4')
            g('v_and_b32 v6, 63, v0'); g('v_cmp_eq_u32 vcc, 0, v6'); g('v_mov_b32 v7, 0x1000')
            g('v_cndmask_b32 v4, v7, v4, vcc'); g('v_cndmask_b32 v5, v7, v5, vcc')
            g('buffer_atomic_umax v2, v4, s[8:11], 0 offen'); g('buffer_atomic_umax v3, v5, s[8:11], 0 offen')
            g('v_readlane_b32 s6, v255, 0'); g('s_nop 1'); g('v_subrev_u32 v2, s6, v255')
            g('v_add_u32 v3, 1, v6'); g('v_lshlrev_b32 v3, 2, v3')
            g('v_cmp_gt_u32 vcc, 15, v6'); g('v_cndmask_b32 v3, v7, v3, vcc')
            g('v_cmp_lt_u32 vcc, 0, v6'); g('v_cndmask_b32 v3, v7, v3, vcc')
            g('s_or_b32 s12, s2, s3'); g('s_cmp_eq_u32 s12, 0'); g('s_cselect_b32 s12, 0, 0x1000')
            g('buffer_store_dword v2, v3, s[8:11], s12 offen')
    g.label('L_exit')
    g('s_endpgm')
    txt = g.finalize(verbose=True)
    txt = txt.replace('    s_mul_i32 s96, s96, 0x9E3779B1', '    s_mov_b32 s97, s96\n    s_mul_i32 s96, s96, 0x9E3779B1')
    txt += f'''.section .rodata,"a"
.p2align 6
.amdhsa_kernel {NAME}
  .amdhsa_next_free_vgpr 512
  .amdhsa_next_free_sgpr 102
  .amdhsa_accum_offset 256
  .amdhsa_group_segment_fixed_size 0
  .amdhsa_kernarg_size 136
  .amdhsa_user_sgpr_count 2
  .amdhsa_user_sgpr_kernarg_segment_ptr 1
  .amdhsa_system_sgpr_workgroup_id_x 1
.end_amdhsa_kernel
'''
    open(path, 'w').write(txt)
    print('max arch vgpr', c.v.maxused, 'bytes', len(txt))

if __name__ == '__main__':
    build(sys.argv[1], sys.argv[2:])
```

```python
import sys
from asmlib import *
from consts import *
import phase1 as p1, phase2 as p2

def build(path, opts=()):
    g = Gen(); c = p1.Ctx()
    c.v = Regs('v', 1, 255); c.s = None
    nt = ' nt' if 'nt' in opts else ''
    c.dbg_carry = 'dbgcarry' in opts
    c.opts = opts
    g.raw(p1.header([f'; @launch grid=(224,1,1) block=(256,1,1) lds={LDS_BYTES}']).rstrip('\n'))
    g.raw('.amdgcn_target "amdgcn-amd-amdhsa--gfx950"\n.text\n.globl %s\n.p2align 8\n.type %s,@function\n%s:' % (NAME, NAME, NAME))
    if 'stamps' in opts:
        g.stamp_v = 255; g.stamp_s = 10; c.v = Regs('v', 1, 254)
        g('v_mov_b32 v255, 0')
        g.stamp(0)
    p1.prologue(g, c)
    g('s_mov_b32 s97, 0')
    p1.small_loads(g, c)
    p1.phase1_setup(g, c)
    p1.phase1_lds_addrs(g, c)
    def early(g, c):
        p1.early(g, c)
    c.early = early
    p1.phase1_main(g, c, nt)
    p1.phase1_epiA(g, c)
    g.stamp(4)
    c.utok = {}; c.ulast = {}
    p2.w2_setup(g, c)
    p2.w2_background(g, c)
    g.pace = int(next((o[5:] for o in opts if o.startswith('pace=')), 22)); g.cnt = 0
    p1.phase1_epiB(g, c)
    g.stamp(5)
    hooks = {1: lambda: p1.eg_loads(g, c)}
    hm_last = p1.phase1_gelu(g, c, hooks)
    g.stamp(6)
    g('s_mov_b32 s82, 0')
    hs_last = p1.phase1_epiD(g, c)
    g.stamp(8)
    p1.flag_store(g, c, OFF_FM, hm_last)
    g.stamp(9)
    g.bg_flush(int(next((o[3:] for o in opts if o.startswith('nf=')), 12)))
    p1.flag_store(g, c, OFF_FS, hs_last)
    g.stamp(10)
    g.bg_flush()
    g.stamp(11)
    v = c.v
    for r in (c.a, c.A16, c.A16s, c.A128, c.A256, c.coef, c.P, c.mean, c.Eown): v.free(r, 2)
    for r in c.idf: v.free(r, 4)
    for r in (c.zr2, c.zi_rev, c.pi, c.sg, c.vl16): v.free(r)
    c.pollv = (c.v.alloc(), c.v.alloc())
    g(f'v_min_u32 v{c.pollv[0]}, 27, v{c.lane}'); g(f'v_lshlrev_b32 v{c.pollv[0]}, 2, v{c.pollv[0]}')
    g('s_mov_b32 s52, 0x0fffffff'); g('s_mov_b32 s53, 0')
    def after_hs(g, c):
        t0, t1 = c.v.alloc(), c.v.alloc()
        g('s_cmp_eq_u32 s6, 31'); g('s_cselect_b32 s84, 0, 1'); g('s_or_b32 s84, s84, s7'); g('s_or_b32 s84, s84, s3')
        g(f's_mov_b32 s85, {WS_USED}'); g('s_cmp_eq_u32 s84, 0'); g(f's_cselect_b32 s84, {OFF_X}, s85')
        g('s_add_u32 s85, s97, 1')
        g(f'v_mov_b32 v{t0}, s85')
        g(f'v_cmp_eq_u32 vcc, 0, v{c.lane}')
        g(f'v_mov_b32 v{t1}, {WS_USED}')
        g(f'v_cndmask_b32 v{t1}, v{t1}, 0, vcc')
        g(f'buffer_store_dword v{t0}, v{t1}, s[28:31], s84 offen sc1')
        c.v.free(t0); c.v.free(t1)
    c.after_hs_poll = after_hs
    p2.phase2_main(g, c)
    p2.phase2_final(g, c)
    if 'stamps' in opts:
        g('s_waitcnt vmcnt(0)')
        g.stamp(15)
        g('v_lshlrev_b32 v1, 2, v0')
        g('s_lshl_b32 s84, s2, 10'); g(f's_add_u32 s84, s84, {OFF_DBG}')
        g('buffer_store_dword v255, v1, s[28:31], s84 offen')
        if 'dbgout' in opts:
            g('s_load_dwordx2 s[4:5], s[0:1], 120'); g('s_waitcnt lgkmcnt(0)')
            g('s_mov_b32 s8, s4'); g('s_and_b32 s9, s5, 0xffff'); g('s_mov_b32 s10, 256'); g('s_mov_b32 s11, 0x20000')
            def rl(dst, k): g(f'v_readlane_b32 s{dst}, v255, {k}')
            vals = []
            rl(12, 0); rl(13, 15)
            g('s_nop 3')
            g('v_mov_b32 v2, 0')
            def put(k, sreg): g(f'v_writelane_b32 v2, s{sreg}, {k}')
            g('s_not_b32 s14, s12'); put(0, 14)
            put(1, 12)
            put(2, 13)
            pairs = [(0, 1), (0, 2), (2, 3), (3, 5), (5, 6), (6, 7), (7, 9), (9, 11), (11, 12), (12, 13), (13, 15), (0, 15)]
            for n, (a, b) in enumerate(pairs):
                rl(14, a); rl(15, b); g('s_nop 3'); g('s_sub_u32 s14, s15, s14'); put(3 + n, 14)
            g('s_lshl_b32 s14, s12, 8'); g('s_or_b32 s14, s14, s2'); put(15, 14)
            g('v_and_b32 v6, 63, v0'); g('v_lshlrev_b32 v3, 2, v6'); g('v_mov_b32 v7, 0x1000')
            g('v_cmp_gt_u32 vcc, 16, v6'); g('v_cndmask_b32 v3, v7, v3, vcc')
            g('s_cmp_eq_u32 s3, 0'); g('s_cselect_b32 s12, 0, 0x1000')
            g('buffer_atomic_umax v2, v3, s[8:11], s12 offen')
    g.label('L_exit')
    g('s_endpgm')
    txt = g.finalize(verbose=True)
    txt = txt.replace('    s_mul_i32 s96, s96, 0x9E3779B1', '    s_mov_b32 s97, s96\n    s_mul_i32 s96, s96, 0x9E3779B1')
    txt += f'''.section .rodata,"a"
.p2align 6
.amdhsa_kernel {NAME}
  .amdhsa_next_free_vgpr 512
  .amdhsa_next_free_sgpr 102
  .amdhsa_accum_offset 256
  .amdhsa_group_segment_fixed_size 0
  .amdhsa_kernarg_size 136
  .amdhsa_user_sgpr_count 2
  .amdhsa_user_sgpr_kernarg_segment_ptr 1
  .amdhsa_system_sgpr_workgroup_id_x 1
.end_amdhsa_kernel
'''
    open(path, 'w').write(txt)
    print('max arch vgpr', c.v.maxused, 'bytes', len(txt))

if __name__ == '__main__':
    build(sys.argv[1], sys.argv[2:])
```
